```python
import torch

def _softmax(x, axis=-1):
    return torch.softmax(x, dim=axis)
def _gelu(x):
    return torch.nn.functional.gelu(x, approximate="tanh")
def _silu(x):
    return torch.nn.functional.silu(x)
def _sigmoid(x):
    return torch.sigmoid(x)
def _layernorm(x, axis=-1, eps=1e-5):
    m = x.mean(dim=axis, keepdim=True)
    v = x.var(dim=axis, keepdim=True, unbiased=False)
    return (x - m) / torch.sqrt(v + eps)
def _scatter_add(tgt, idx, src, axis=0):
    return tgt.clone().index_add_(axis, idx, src)
def _segment_sum(src, seg, n):
    out = torch.zeros((n,) + src.shape[1:], dtype=src.dtype)
    return out.index_add_(0, seg, src)
def _pad(x, pw):
    flat = tuple(v for pair in reversed(pw) for v in pair)
    return torch.nn.functional.pad(x, flat)

kernel_name = 'gated_mix__gqa_block_cached__glu_gated_glu__decode'

def setup_inputs():

    _w = (lambda a: (lambda t: t.to(torch.bfloat16) if t.is_floating_point() else t)(torch.as_tensor(a)))
    def _A_setup():
        B, Sq, D = 2, 1, 448
        Hq, Hkv, Sk, Dh = 16, 8, 16384, 256
        assert Hq % Hkv == 0, (Hq, Hkv)
        return {
            "x": _w((lambda *s: torch.randn(*s, dtype=torch.bfloat16) * 0.05)(B, Sq, D)),
            "k_cache": _w((lambda *s: torch.randn(*s, dtype=torch.bfloat16) * 6.4)(B, Hkv, Sk, Dh)),
            "v_cache": _w((lambda *s: torch.randn(*s, dtype=torch.bfloat16) * 0.4)(B, Hkv, Sk, Dh)),
            "wq": _w((lambda *s: torch.randn(*s, dtype=torch.bfloat16) * 6.4)(D, Hq * Dh) * (D ** -0.5)),
            "wo": _w((lambda *s: torch.randn(*s, dtype=torch.bfloat16) * 0.4)(Hq * Dh, D) * ((Hq * Dh) ** -0.5)),
        }
    _A_in = _A_setup()

    def _B_setup():
        B, S, D, F = 2, 1, 448, 1792
        return {
            "x": _w((lambda *s: torch.randn(*s, dtype=torch.bfloat16) * 0.05)(B, S, D)),
            "w_gate": _w((lambda *s: torch.randn(*s, dtype=torch.bfloat16) * 0.4)(D, F)),
            "w_up": _w((lambda *s: torch.randn(*s, dtype=torch.bfloat16) * 0.05)(D, F)),
            "w_down": _w((lambda *s: torch.randn(*s, dtype=torch.bfloat16) * 0.05)(F, D)),
        }
    _B_in = _B_setup()

    return {
        "A_x": _A_in["x"],
        "A_k_cache": _A_in["k_cache"],
        "A_v_cache": _A_in["v_cache"],
        "A_wq": _A_in["wq"],
        "A_wo": _A_in["wo"],
        "B_x": _B_in["x"],
        "B_w_gate": _B_in["w_gate"],
        "B_w_up": _B_in["w_up"],
        "B_w_down": _B_in["w_down"],
        "gate_w": _w((lambda *s: torch.randn(*s, dtype=torch.bfloat16) * 0.05)(448) * 16.0),
    }

def reference(A_x, A_k_cache, A_v_cache, A_wq, A_wo, B_x, B_w_gate, B_w_up, B_w_down, gate_w):
    def _A_ref(x, k_cache, v_cache, wq, wo):
        B, Sq, D = x.shape
        Hq, Dh = 16, 256
        Hkv = k_cache.shape[1]
        rep = Hq // Hkv
        q = (lambda x, *d: x.permute(*d))((x @ wq).reshape(B, Sq, Hq, Dh), 0, 2, 1, 3)
        k = (lambda x, n, axis: torch.repeat_interleave(x, n, dim=axis))(k_cache, rep, axis=1)
        v = (lambda x, n, axis: torch.repeat_interleave(x, n, dim=axis))(v_cache, rep, axis=1)
        scores = torch.einsum("bhqd,bhkd->bhqk", q, k) * (Dh ** -0.5)
        p = _softmax(scores, axis=-1)
        o = torch.einsum("bhqk,bhkd->bhqd", p, v)
        return (lambda x, *d: x.permute(*d))(o, 0, 2, 1, 3).reshape(B, Sq, Hq * Dh) @ wo

    def _B_ref(x, w_gate, w_up, w_down):
        g = torch.einsum("bsd,df->bsf", x, w_gate)
        u = torch.einsum("bsd,df->bsf", x, w_up)
        h = _sigmoid(g) * u
        return torch.einsum("bsf,fd->bsd", h, w_down)

    x = A_x
    g = _sigmoid((x * gate_w).sum(-1, keepdims=True))
    a = _A_ref(x, A_k_cache, A_v_cache, A_wq, A_wo)
    b = _B_ref(x, B_w_gate, B_w_up, B_w_down)
    return g * a + (1 - g) * b
```

```python
import sys, json
KNAME = "gated_mix__gqa_block_cached__glu_gated_glu__decode_kernel"

HEADER = """; Kernarg layout for this problem (104 bytes, ptrs only, base s[0:1]):
"""

W_EPOCH = 0
W_CNT   = 0x1000
W_Q     = 0x8000
W_O     = 0x10000
W_ML    = 0x90000
W_A     = 0x100000
W_DBG   = 0x400000
W_SIZE  = 0x800000

L_X   = 0
L_WQ  = 2048
L_G   = 16384
L_U   = 16384 + 7168
L_Q   = 30720
L_ML  = 31744
L_P   = 32768
LDS_SIZE = 40960

NH, NS = 10, 7
LOG2E = 1.4426950408889634
import struct
def f2u(x): return struct.unpack("<I", struct.pack("<f", x))[0]

def gen(NB=4, S=24, dbg=0, lay2=1, spin=200000, wflags="nt", glu_late=0, atom_late=0):
    L = []
    def A(s):
        for line in s.split("\n"):
            line = line.strip()
            if line: L.append(("" if line.endswith(":") else "    ") + line)
    U = (32 - S) * 16
    D = (32 - S) * 4
    nst = [0]
    def stamp(k):
        if dbg: A(f"s_memrealtime s[{64+2*k}:{65+2*k}]")
    def dump(n):
        if not dbg: return
        A("s_waitcnt lgkmcnt(0)")
        A("s_mul_i32 s60, s2, 5\ns_add_u32 s60, s60, s3\ns_lshl_b32 s60, s60, 6")
        A(f"s_add_u32 s60, s60, {W_DBG}")
        A("s_mov_b64 exec, 1")
        A("v_mov_b32 v1, 0")
        for k in range(n):
            A(f"v_mov_b32 v2, s{64+2*k}")
            A(f"buffer_store_dword v2, v1, s[40:43], s60 offen offset:{4*k}")
        A("s_getreg_b32 s61, hwreg(HW_REG_XCC_ID)")
        A("v_mov_b32 v2, s61")
        A("buffer_store_dword v2, v1, s[40:43], s60 offen offset:60")
        A("v_mov_b32 v2, s46")
        A("buffer_store_dword v2, v1, s[40:43], s60 offen offset:56")

    L.append(HEADER.rstrip())
    L.append(f"; @launch grid=(256,1,1) block=(320,1,1) lds={LDS_SIZE}")
    L.append('.amdgcn_target "amdgcn-amd-amdhsa--gfx950"')
    L.append(".text")
    L.append(f".globl {KNAME}")
    L.append(".p2align 8")
    L.append(f".type {KNAME},@function")
    L.append(f"{KNAME}:")
    A("s_cmp_ge_u32 s2, 256")
    A("s_cbranch_scc1 L_end")
    stamp(0)
    A("""s_load_dwordx16 s[4:19], s[0:1], 0
         s_load_dwordx8 s[20:27], s[0:1], 64
         s_load_dwordx2 s[28:29], s[0:1], 96
         v_lshrrev_b32 v1, 6, v0
         v_and_b32 v0, 63, v0
         v_readfirstlane_b32 s3, v1
         v_lshrrev_b32 v2, 4, v0
         v_and_b32 v3, 15, v0
         s_mov_b32 s35, 0x20000
         s_mov_b32 s39, 0x20000
         s_mov_b32 s43, 0x20000""")
    A(f"s_mov_b32 s42, {W_SIZE}")
    A("s_cmp_eq_u32 s3, 0")
    A("s_cbranch_scc0 L_stream")
    A("""s_and_b32 s44, s2, 7
         s_lshl_b32 s44, s44, 2
         s_lshr_b32 s45, s2, 7
         s_lshl_b32 s45, s45, 1
         s_add_u32 s44, s44, s45
         s_bfe_u32 s45, s2, 0x10003
         s_add_u32 s44, s44, s45
         s_bfe_u32 s45, s2, 0x30004
         s_lshl_b32 s47, s45, 5
         s_add_u32 s47, s47, s44
         s_lshl_b32 s48, s47, 5
         v_lshrrev_b32 v4, 1, v0
         v_lshlrev_b32 v4, 13, v4
         v_and_b32 v5, 1, v0
         v_lshl_add_u32 v4, v5, 4, v4
         v_lshlrev_b32 v5, 4, v0
         s_mov_b32 s34, 1792
         s_mov_b32 s38, 3670016""")
    A("""s_waitcnt lgkmcnt(0)
         s_load_dword s46, s[28:29], 0
         s_mov_b32 s36, s10
         s_mov_b32 s37, s11
         s_mov_b32 s32, s4
         s_mov_b32 s33, s5
         s_mov_b32 s40, s28
         s_mov_b32 s41, s29""")
    for t in range(14):
        A(f"s_mov_b32 m0, {L_WQ + 1024*t}")
        if t: A(f"s_add_u32 s48, s48, {32*8192}")
        else: A("s_nop 0")
        A(f"buffer_load_dwordx4 v4, s[36:39], s48 offen {wflags} lds")
    A(f"s_mov_b32 m0, {L_X}")
    A("s_nop 0")
    A("buffer_load_dwordx4 v5, s[32:35], 0 offen lds")
    A("buffer_load_dwordx4 v5, s[32:35], 0 offen offset:1024 lds")
    A("s_branch L_helper")

    VK, VV = 4, 5
    VQ = 8
    VMASK = 16
    VACC = 20
    VM, VMC, VL = 28, 29, 30
    VS = 32
    VA = 40
    VT = 48
    VB = 56
    def buf(n): return VB + 32 * n
    A("L_stream:")
    A(f"""v_lshrrev_b32 v{VK}, 2, v3
          v_lshlrev_b32 v{VK}, 9, v{VK}
          v_lshl_add_u32 v{VK}, v2, 6, v{VK}
          v_and_b32 v6, 3, v3
          v_lshl_add_u32 v{VK}, v6, 4, v{VK}
          v_lshlrev_b32 v{VV}, 9, v2
          v_lshl_add_u32 v{VV}, v3, 4, v{VV}
          s_sub_u32 s44, s3, 1
          s_lshl_b32 s45, s2, 19
          s_lshl_b32 s47, s44, 12
          s_add_u32 s45, s45, s47
          s_mov_b32 s34, 0x8000000
          s_mov_b32 s38, 0x8000000
          s_waitcnt lgkmcnt(0)
          s_mov_b32 s32, s6
          s_mov_b32 s33, s7
          s_mov_b32 s36, s8
          s_mov_b32 s37, s9""")
    offs = [0, 256, 2048, 2304]
    def issue(n):
        b = buf(n)
        for m in range(4):
            A(f"buffer_load_dwordx4 v[{b+4*m}:{b+4*m+3}], v{VK}, s[32:35], s45 offen offset:{offs[m]} nt")
        for m in range(4):
            A(f"buffer_load_dwordx4 v[{b+16+4*m}:{b+16+4*m+3}], v{VV}, s[36:39], s45 offen offset:{offs[m]} nt")
    issue(0)
    A(f"""s_mov_b32 s40, s28
          s_mov_b32 s41, s29
          s_lshr_b32 s47, s2, 4
          s_lshl_b32 s48, s47, 2
          s_add_u32 s48, s48, s44
          s_lshl_b32 s48, s48, 8
          s_add_u32 s48, s48, {W_CNT}
          s_add_u32 s50, s28, s48
          s_addc_u32 s51, s29, 0
          s_lshl_b32 s47, s47, 23
          s_lshl_b32 s48, s44, 21
          s_add_u32 s47, s47, s48
          s_add_u32 s47, s47, {S*4*4096}
          s_mov_b32 s46, {NB}
          s_mov_b32 s49, {NB-2}
          s_mov_b32 s52, 0x{f2u(LOG2E/16):08x}
          s_mov_b32 s53, 0""")
    A(f"""v_and_b32 v6, 1, v3
          v_cmp_eq_u32 vcc, 1, v6
          v_mov_b32 v7, 0xffff
          v_mov_b32 v{VT}, 0xffff0000
          v_cndmask_b32 v7, v7, v{VT}, vcc
          v_bfe_u32 v6, v3, 1, 2""")
    for r in range(4):
        A(f"""v_cmp_eq_u32 vcc, {r}, v6
              s_nop 1
              v_cndmask_b32 v{VMASK+r}, 0, v7, vcc""")
    for r in range(8): A(f"v_mov_b32 v{VACC+r}, 0")
    A(f"""v_mov_b32 v{VM}, 0xff7fffff
          v_mov_b32 v{VMC}, 0
          v_mov_b32 v{VL}, 0""")
    A(f"""v_lshrrev_b32 v6, 3, v3
          v_lshlrev_b32 v6, 9, v6
          v_lshl_add_u32 v6, v2, 6, v6
          v_and_b32 v{VT}, 3, v3
          v_lshl_add_u32 v6, v{VT}, 4, v6
          v_lshrrev_b32 v7, 1, v2
          v_lshlrev_b32 v7, 10, v7
          v_lshl_add_u32 v7, v3, 5, v7
          v_and_b32 v{VT}, 1, v2
          v_lshl_add_u32 v7, v{VT}, 4, v7
          s_lshl_b32 s48, s44, 11
          v_add_u32 v7, s48, v7""")
    for n in range(1, NB):
        A("s_add_u32 s45, s45, 16384")
        A("s_waitcnt vmcnt(0)")
        if n == 1: stamp(1)
        issue(n)
    stamp(2)
    A("s_barrier")
    A(f"ds_read_b128 v[{VQ}:{VQ+3}], v6 offset:{L_Q}")
    A(f"ds_read_b128 v[{VQ+4}:{VQ+7}], v6 offset:{L_Q+256}")
    stamp(3)
    A("s_waitcnt lgkmcnt(0)")
    dppf = "row_mask:0xf bank_mask:0xf"
    def process(n):
        b = buf(n)
        A(f"""v_mfma_f32_16x16x32_bf16 v[{VS}:{VS+3}], v[{b}:{b+3}], v[{VQ}:{VQ+3}], 0
              v_mfma_f32_16x16x32_bf16 v[{VS+4}:{VS+7}], v[{b+8}:{b+11}], v[{VQ}:{VQ+3}], 0
              v_mfma_f32_16x16x32_bf16 v[{VS}:{VS+3}], v[{b+4}:{b+7}], v[{VQ+4}:{VQ+7}], v[{VS}:{VS+3}]
              v_mfma_f32_16x16x32_bf16 v[{VS+4}:{VS+7}], v[{b+12}:{b+15}], v[{VQ+4}:{VQ+7}], v[{VS+4}:{VS+7}]
              s_nop 6
              v_mov_b32_dpp v{VT}, v{VS} quad_perm:[0,0,0,0] {dppf}
              v_mov_b32_dpp v{VT+1}, v{VS+4} quad_perm:[0,0,0,0] {dppf}
              v_mov_b32_dpp v{VT+2}, v{VS+2} quad_perm:[2,2,2,2] {dppf}
              v_mov_b32_dpp v{VT+3}, v{VS+6} quad_perm:[2,2,2,2] {dppf}
              v_add_f32_dpp v{VT}, v{VS+1}, v{VT} quad_perm:[1,1,1,1] {dppf}
              v_add_f32_dpp v{VT+1}, v{VS+5}, v{VT+1} quad_perm:[1,1,1,1] {dppf}
              v_add_f32_dpp v{VT+2}, v{VS+3}, v{VT+2} quad_perm:[3,3,3,3] {dppf}
              v_add_f32_dpp v{VT+3}, v{VS+7}, v{VT+3} quad_perm:[3,3,3,3] {dppf}
              v_add_f32 v{VT}, v{VT}, v{VT+2}
              v_add_f32 v{VT+1}, v{VT+1}, v{VT+3}""")
        A(f"""v_cvt_pk_bf16_f32 v{VT+1}, v{VT}, v{VT+1}
              v_lshlrev_b32 v{VT}, 16, v{VT+1}
              v_and_b32 v{VT+1}, 0xffff0000, v{VT+1}
              v_max_f32 v{VT+2}, v{VT}, v{VT+1}
              v_cmp_gt_f32 vcc, v{VT+2}, v{VM}
              s_cbranch_vccz L_nomax{n}""")
        A(f"""v_max_f32 v{VT+2}, v{VT+2}, v{VM}
              v_mov_b32 v{VT+3}, v{VT+2}
              s_nop 1
              v_permlane16_swap_b32 v{VT+2}, v{VT+3}
              v_max_f32 v{VT+2}, v{VT+2}, v{VT+3}
              v_mov_b32 v{VT+3}, v{VT+2}
              s_nop 1
              v_permlane32_swap_b32 v{VT+2}, v{VT+3}
              v_max_f32 v{VT+2}, v{VT+2}, v{VT+3}
              v_sub_f32 v{VT+3}, v{VM}, v{VT+2}
              v_mul_f32 v{VT+3}, s52, v{VT+3}
              v_exp_f32 v{VT+3}, v{VT+3}
              v_mov_b32 v{VM}, v{VT+2}
              v_mul_f32 v{VMC}, s52, v{VT+2}
              v_mul_f32 v{VL}, v{VL}, v{VT+3}
              v_mov_b32 v{VT+4}, v{VT+3}
              s_nop 1
              v_mov_b32_dpp v{VT+4}, v{VT+3} row_ror:8 row_mask:0x3 bank_mask:0xc
              s_nop 1
              v_mov_b32_dpp v{VT+4}, v{VT+3} row_ror:8 row_mask:0xc bank_mask:0x3""")
        for r in range(8): A(f"v_mul_f32 v{VACC+r}, v{VACC+r}, v{VT+4}")
        A(f"L_nomax{n}:")
        A(f"""v_fma_f32 v{VT}, v{VT}, s52, -v{VMC}
              v_fma_f32 v{VT+1}, v{VT+1}, s52, -v{VMC}
              v_exp_f32 v{VT}, v{VT}
              v_exp_f32 v{VT+1}, v{VT+1}
              v_cvt_pk_bf16_f32 v{VT+2}, v{VT}, v{VT}
              v_add_f32 v{VL}, v{VL}, v{VT}
              v_cvt_pk_bf16_f32 v{VT+3}, v{VT+1}, v{VT+1}""")
        for r in range(4): A(f"v_and_b32 v{VA+r}, v{VT+2}, v{VMASK+r}")
        for r in range(4): A(f"v_and_b32 v{VA+4+r}, v{VT+3}, v{VMASK+r}")
        A(f"""v_add_f32 v{VL}, v{VL}, v{VT+1}
              v_mfma_f32_16x16x32_bf16 v[{VACC}:{VACC+3}], v[{VA}:{VA+3}], v[{b+16}:{b+19}], v[{VACC}:{VACC+3}]
              v_mfma_f32_16x16x32_bf16 v[{VACC+4}:{VACC+7}], v[{VA}:{VA+3}], v[{b+20}:{b+23}], v[{VACC+4}:{VACC+7}]
              v_mfma_f32_16x16x32_bf16 v[{VACC}:{VACC+3}], v[{VA+4}:{VA+7}], v[{b+24}:{b+27}], v[{VACC}:{VACC+3}]
              v_mfma_f32_16x16x32_bf16 v[{VACC+4}:{VACC+7}], v[{VA+4}:{VA+7}], v[{b+28}:{b+31}], v[{VACC+4}:{VACC+7}]""")
    def ticket_req(n, tag):
        A(f"""s_cmp_lt_u32 s46, {S}
              s_cbranch_scc1 L_noat{tag}{n}
              s_mov_b32 s53, 1
              s_atomic_add s53, s[50:51], 0 glc""")
        A(f"L_noat{tag}{n}:")
    magic = (65536 + D - 1) // D
    assert all((u * magic) >> 16 == u // D for u in range(U))
    A("L_loop:")
    for n in range(NB):
        A(f"L_step{n}:")
        process(n)
        nxt = f"L_step{(n+1) % NB}"
        A(f"""s_cmp_eq_u32 s49, 0
              s_cbranch_scc0 L_skip{n}""")
        if atom_late: ticket_req(n, "a")
        A(f"""s_add_u32 s45, s45, 16384
              s_cmp_lt_u32 s46, {S}
              s_cbranch_scc1 L_go{n}
              s_waitcnt lgkmcnt(0)
              s_cmp_ge_u32 s53, {U}
              s_cbranch_scc1 L_dry{n}
              s_mul_i32 s54, s53, {magic}
              s_lshr_b32 s54, s54, 16
              s_mul_i32 s55, s54, {128 - D}
              s_add_u32 s55, s55, s53
              s_lshl_b32 s55, s55, 12
              s_add_u32 s45, s55, s47""")
        A(f"L_go{n}:")
        A("s_add_u32 s46, s46, 1")
        A("s_waitcnt vmcnt(0)")
        issue((n + 2) % NB)
        if not atom_late: ticket_req(n, "b")
        if n == NB - 1: A("s_branch L_step0")
    for n in range(NB):
        nxt = f"L_step{(n+1) % NB}"
        A(f"""L_dry{n}:
              s_mov_b32 s49, -1
              s_waitcnt vmcnt(0)
              s_branch {nxt}
              L_skip{n}:
              s_cmp_eq_u32 s49, -1
              s_cbranch_scc1 L_tail
              s_sub_u32 s49, s49, 1
              s_branch {nxt}""")
    A("L_tail:")
    stamp(4)
    A(f"""v_mov_b32 v{VT}, v{VL}
          s_lshl_b32 s48, s44, 3
          v_lshrrev_b32 v6, 3, v0
          v_permlane16_swap_b32 v{VL}, v{VT}
          v_add_f32 v{VL}, v{VL}, v{VT}
          v_mov_b32 v{VT}, v{VL}
          v_lshlrev_b32 v6, 5, v6
          v_add_u32 v6, s48, v6
          v_permlane32_swap_b32 v{VL}, v{VT}
          v_add_f32 v{VMC}, v{VL}, v{VT}
          ds_write_b128 v7, v[{VACC}:{VACC+3}] offset:{L_P}
          ds_write_b128 v7, v[{VACC+4}:{VACC+7}] offset:{L_P+512}
          s_mov_b64 exec, 0x101
          ds_write_b64 v6, v[{VM}:{VM+1}] offset:{L_ML}
          s_mov_b64 exec, -1
          s_waitcnt lgkmcnt(0)
          s_barrier""")
    stamp(5)
    A("""s_cmp_ge_u32 s44, 2
         s_cbranch_scc1 L_sdone""")
    A(f"""s_lshl_b32 s48, s44, 5
          v_mov_b32 v6, s48
          s_lshl_b32 s48, s44, 10
          v_lshl_add_u32 v7, v0, 4, s48
          ds_read_b128 v[32:35], v6 offset:{L_ML}
          ds_read_b128 v[36:39], v6 offset:{L_ML+16}""")
    for w in range(4):
        A(f"ds_read_b128 v[{56+4*w}:{59+4*w}], v7 offset:{L_P + 2048*w}")
    A(f"""s_lshl_b32 s54, s2, 11
          s_add_u32 s54, s54, {W_O}
          s_lshl_b32 s55, s2, 7
          s_add_u32 s55, s55, {W_ML}
          s_lshl_b32 s48, s44, 3
          v_mov_b32 v6, s48
          s_waitcnt lgkmcnt({0 if dbg else 4})
          v_max3_f32 v40, v32, v34, v36
          v_max_f32 v40, v40, v38
          v_sub_f32 v32, v32, v40
          v_sub_f32 v34, v34, v40
          v_sub_f32 v36, v36, v40
          v_sub_f32 v38, v38, v40
          v_mul_f32 v32, s52, v32
          v_mul_f32 v34, s52, v34
          v_mul_f32 v36, s52, v36
          v_mul_f32 v38, s52, v38
          v_exp_f32 v32, v32
          v_exp_f32 v34, v34
          v_exp_f32 v36, v36
          v_exp_f32 v38, v38
          s_waitcnt lgkmcnt(0)""")
    for r in range(4): A(f"v_mul_f32 v{44+r}, v32, v{56+r}")
    for w in range(1, 4):
        for r in range(4): A(f"v_fmac_f32 v{44+r}, v{32+2*w}, v{56+4*w+r}")
    A("""buffer_store_dwordx4 v[44:47], v7, s[40:43], s54 offen sc1
         v_mul_f32 v41, v32, v33
         v_fmac_f32 v41, v34, v35
         v_fmac_f32 v41, v36, v37
         v_fmac_f32 v41, v38, v39
         s_mov_b64 exec, 1
         buffer_store_dwordx2 v[40:41], v6, s[40:43], s55 offen sc1""")
    A("L_sdone:")
    stamp(6)
    dump(7)
    A("s_endpgm")

    A("L_helper:")
    HX = 8
    HB = 64
    HWO = 120
    HWD = 184
    HDB = 216
    HMASK = 232
    HG = 236
    A(f"""v_mov_b32 v8, -1
          v_mov_b32 v9, -1
          v_mov_b32 v10, -1
          v_mov_b32 v11, -1
          s_lshl_b32 s54, s2, 11
          s_add_u32 s54, s54, {W_O}
          s_lshl_b32 s55, s2, 7
          s_add_u32 s55, s55, {W_ML}
          buffer_store_dwordx4 v[8:11], v5, s[40:43], s54 offen sc1
          buffer_store_dwordx4 v[8:11], v5, s[40:43], s54 offen offset:1024 sc1
          s_lshl_b32 s56, s2, 12
          s_add_u32 s56, s56, {W_A}""")
    for k in range(4):
        A(f"buffer_store_dwordx4 v[8:11], v5, s[40:43], s56 offen offset:{1024*k} sc1")
    A(f"""s_mov_b64 exec, 0xff
          buffer_store_dwordx4 v[8:11], v5, s[40:43], s55 offen sc1
          s_mov_b64 exec, 1
          s_and_b32 s57, s2, 15
          s_cmp_ge_u32 s57, 4
          s_cbranch_scc1 L_nocnt
          s_lshr_b32 s58, s2, 4
          s_lshl_b32 s58, s58, 2
          s_add_u32 s58, s58, s57
          s_lshl_b32 s58, s58, 8
          s_add_u32 s58, s58, {W_CNT}
          buffer_store_dword v5, v5, s[40:43], s58 offen sc1
          L_nocnt:
          s_mov_b64 exec, -1""")
    A(f"""v_and_b32 v6, 1, v3
          v_mul_u32_u24 v6, 896, v6
          v_lshl_add_u32 v6, v2, 4, v6
          v_lshlrev_b32 v7, 8, v2
          v_lshl_add_u32 v7, v3, 3, v7""")
    A(f"""v_lshlrev_b32 v1, 14, v2
          v_lshl_add_u32 v1, v3, 2, v1
          s_lshl_b32 s57, s45, 11
          s_lshl_b32 s58, s44, 6
          s_add_u32 s57, s57, s58
          s_add_u32 s57, s57, {W_Q}
          s_lshr_b32 s58, s2, 4
          s_lshl_b32 s58, s58, 11
          s_add_u32 s58, s58, {W_Q}
          s_waitcnt vmcnt(0) lgkmcnt(0)""")
    stamp(1)
    A("s_add_u32 s46, s46, 0x01010101")
    for t in range(14):
        A(f"ds_read_b128 v[{HX+4*t}:{HX+4*t+3}], v6 offset:{L_X + 64*t}")
        A(f"ds_read_b64_tr_b16 v[{HB+4*t}:{HB+4*t+1}], v7 offset:{L_WQ + 1024*t}")
        A(f"ds_read_b64_tr_b16 v[{HB+4*t+2}:{HB+4*t+3}], v7 offset:{L_WQ + 1024*t + 128}")
    A("s_waitcnt lgkmcnt(0)")
    for t in range(14):
        c = "0" if t < 2 else f"v[{240+4*(t&1)}:{243+4*(t&1)}]"
        A(f"v_mfma_f32_16x16x32_bf16 v[{240+4*(t&1)}:{243+4*(t&1)}], v[{HX+4*t}:{HX+4*t+3}], v[{HB+4*t}:{HB+4*t+3}], {c}")
    A(f"""v_cmp_eq_u32 vcc, 1, v2
          v_mov_b32 v249, s46
          s_nop 6
          v_add_f32 v240, v240, v244
          v_add_f32 v241, v241, v245
          v_cndmask_b32 v240, v240, v241, vcc
          s_nop 1
          v_mov_b32_dpp v241, v240 quad_perm:[1,1,3,3] {dppf}
          v_cvt_pk_bf16_f32 v248, v240, v241
          s_mov_b64 exec, 0x55555555
          buffer_store_dwordx2 v[248:249], v1, s[40:43], s57 offen sc1
          s_mov_b64 exec, -1""")
    stamp(2)
    A(f"""s_mov_b32 s59, {spin}
          v_lshlrev_b32 v1, 3, v0
          L_qpoll:
          buffer_load_dwordx4 v[240:243], v5, s[40:43], s58 offen sc1
          buffer_load_dwordx4 v[244:247], v5, s[40:43], s58 offen offset:1024 sc1
          s_sub_u32 s59, s59, 1
          s_cbranch_scc1 L_qok
          s_waitcnt vmcnt(0)
          v_cmp_ne_u32 vcc, s46, v241
          v_cmp_ne_u32 s[60:61], s46, v243
          s_or_b64 s[62:63], vcc, s[60:61]
          v_cmp_ne_u32 vcc, s46, v245
          v_cmp_ne_u32 s[60:61], s46, v247
          s_or_b64 s[62:63], vcc, s[62:63]
          s_or_b64 s[62:63], s[60:61], s[62:63]
          s_cbranch_scc1 L_qpoll
          L_qok:
          s_waitcnt vmcnt(0)
          v_mov_b32 v241, v242
          v_mov_b32 v245, v246
          ds_write_b64 v1, v[240:241] offset:{L_Q}
          ds_write_b64 v1, v[244:245] offset:{L_Q+512}
          s_waitcnt lgkmcnt(0)
          s_barrier""")
    stamp(3)
    A(f"""s_mov_b32 s32, s22
          s_mov_b32 s33, s23
          s_mov_b32 s34, 896
          v_and_b32 v1, 31, v0
          v_lshlrev_b32 v1, 5, v1
          buffer_load_dwordx4 v[{HB}:{HB+3}], v1, s[32:35], 0 offen
          buffer_load_dwordx4 v[{HB+4}:{HB+7}], v1, s[32:35], 0 offen offset:16
          v_lshrrev_b32 v4, 5, v0
          v_mul_u32_u24 v4, 896, v4
          v_add_u32 v4, v4, v1
          ds_read_b128 v[{HB+8}:{HB+11}], v4 offset:{L_X}
          ds_read_b128 v[{HB+12}:{HB+15}], v4 offset:{L_X+16}
          v_mov_b32 v{HG}, 0
          s_mov_b32 exec_lo, 0x0fffffff
          s_mov_b32 exec_hi, 0x0fffffff
          s_waitcnt vmcnt(0) lgkmcnt(0)""")
    for k in range(8):
        A(f"""v_lshlrev_b32 v240, 16, v{HB+k}
              v_and_b32 v241, 0xffff0000, v{HB+k}
              v_lshlrev_b32 v242, 16, v{HB+8+k}
              v_and_b32 v243, 0xffff0000, v{HB+8+k}
              v_mul_f32 v240, v240, v242
              v_mul_f32 v241, v241, v243
              v_cvt_pk_bf16_f32 v240, v240, v241
              v_lshlrev_b32 v241, 16, v240
              v_and_b32 v240, 0xffff0000, v240
              v_add_f32 v{HG}, v{HG}, v241
              v_add_f32 v{HG}, v{HG}, v240""")
    A("s_mov_b64 exec, -1")
    for d in ("quad_perm:[1,0,3,2]", "quad_perm:[2,3,0,1]", "row_half_mirror", "row_mirror"):
        A(f"s_nop 1\nv_add_f32_dpp v{HG}, v{HG}, v{HG} {d} {dppf}")
    A(f"""v_mov_b32 v240, v{HG}
          s_nop 1
          v_permlane16_swap_b32 v{HG}, v240
          v_add_f32 v{HG}, v{HG}, v240
          v_cvt_pk_bf16_f32 v{HG}, v{HG}, v{HG}
          v_and_b32 v{HG}, 0xffff0000, v{HG}
          v_mul_f32 v{HG}, 0x{f2u(-LOG2E):08x}, v{HG}
          v_exp_f32 v{HG}, v{HG}
          s_nop 0
          v_add_f32 v{HG}, 1.0, v{HG}
          v_rcp_f32 v{HG}, v{HG}
          s_nop 0
          v_cvt_pk_bf16_f32 v{HG}, v{HG}, v{HG}
          v_and_b32 v{HG}, 0xffff0000, v{HG}
          v_sub_f32 v{HG+1}, 1.0, v{HG}
          v_cvt_pk_bf16_f32 v{HG+1}, v{HG+1}, v{HG+1}
          v_and_b32 v{HG+1}, 0xffff0000, v{HG+1}""")
    A(f"""v_and_b32 v1, 1, v3
          v_cmp_eq_u32 vcc, 1, v1
          v_mov_b32 v4, 0xffff
          v_mov_b32 v240, 0xffff0000
          v_cndmask_b32 v4, v4, v240, vcc
          v_bfe_u32 v1, v3, 1, 2""")
    for r in range(4):
        A(f"""v_cmp_eq_u32 vcc, {r}, v1
              s_nop 1
              v_cndmask_b32 v{HMASK+r}, 0, v4, vcc""")
    A(f"""s_mov_b32 s59, {spin}
          v_lshlrev_b32 v1, 6, v0
          s_mov_b32 s57, {W_Q}
          s_mov_b32 s58, {W_Q + 8192}
          v_add_u32 v4, 0x1000, v1
          L_rpoll:
          buffer_load_dwordx2 v[240:241], v1, s[40:43], s57 offen sc1
          buffer_load_dwordx2 v[242:243], v4, s[40:43], s57 offen sc1
          buffer_load_dwordx2 v[244:245], v1, s[40:43], s58 offen sc1
          buffer_load_dwordx2 v[246:247], v4, s[40:43], s58 offen sc1
          s_sub_u32 s59, s59, 1
          s_cbranch_scc1 L_rok
          s_waitcnt vmcnt(0)
          v_cmp_ne_u32 vcc, s46, v241
          v_cmp_ne_u32 s[60:61], s46, v243
          s_or_b64 s[62:63], vcc, s[60:61]
          v_cmp_ne_u32 vcc, s46, v245
          v_cmp_ne_u32 s[60:61], s46, v247
          s_or_b64 s[62:63], vcc, s[62:63]
          s_or_b64 s[62:63], s[60:61], s[62:63]
          s_cbranch_scc1 L_rpoll
          L_rok:
          s_waitcnt vmcnt(0)""")
    A(f"""s_mov_b32 s36, s12
          s_mov_b32 s37, s13
          s_mul_i32 s57, s47, {16*896}
          v_mul_u32_u24 v1, {4*896}, v2
          v_lshl_add_u32 v1, v3, 4, v1""")
    for t in range(4):
        for cb in range(4):
            r = HWO + 16 * t + 4 * cb
            A(f"buffer_load_dwordx4 v[{r}:{r+3}], v1, s[36:39], s57 offen offset:{896*t + 256*cb} {wflags}")
    for r in range(16): A(f"v_mov_b32 v{HDB+r}, 0")
    A(f"""s_lshr_b32 s57, s2, 3
          s_cmp_ge_u32 s57, 28
          s_cbranch_scc1 L_noglu
          s_and_b32 s58, s2, 7
          s_mul_i32 s58, s58, 28
          s_add_u32 s57, s57, s58
          s_lshl_b32 s58, s57, 4
          s_mov_b32 s32, s16
          s_mov_b32 s33, s17
          s_mov_b32 s34, 1605632
          v_mul_u32_u24 v1, 3584, v0""")
    for mat in range(2):
        if mat:
            A("s_mov_b32 s32, s18\ns_mov_b32 s33, s19\ns_lshl_b32 s58, s57, 4")
        for t in range(7):
            A(f"s_mov_b32 m0, {(L_U if mat else L_G) + 1024*t}")
            if t: A(f"s_add_u32 s58, s58, {64*3584}")
            else: A("s_nop 0")
            A(f"buffer_load_dwordx4 v1, s[32:35], s58 offen {wflags} lds")
    A(f"""s_mov_b32 s32, s20
          s_mov_b32 s33, s21
          s_mul_i32 s58, s57, {8*896}
          v_mul_u32_u24 v1, {2*896}, v2
          v_lshl_add_u32 v1, v3, 4, v1""")
    for t in range(2):
        for cb in range(4):
            r = HWD + 16 * t + 4 * cb
            A(f"buffer_load_dwordx4 v[{r}:{r+3}], v1, s[32:35], s58 offen offset:{896*t + 256*cb} {wflags}")
    A(f"""v_lshrrev_b32 v7, 2, v3
          v_lshl_add_u32 v7, v2, 3, v7
          v_lshlrev_b32 v7, 4, v7
          v_and_b32 v1, 1, v3
          v_lshl_add_u32 v7, v1, 3, v7
          v_bfe_u32 v1, v3, 1, 1
          v_mul_u32_u24 v1, 7168, v1
          v_add_u32 v7, v7, v1
          s_waitcnt vmcnt(0)""")
    for t in range(14):
        A(f"ds_read_b64_tr_b16 v[{HB+4*t}:{HB+4*t+1}], v7 offset:{L_G + 512*t}")
        A(f"ds_read_b64_tr_b16 v[{HB+4*t+2}:{HB+4*t+3}], v7 offset:{L_G + 512*t + 64}")
    A("s_waitcnt lgkmcnt(0)")
    for t in range(14):
        c = "0" if t < 2 else f"v[{240+4*(t&1)}:{243+4*(t&1)}]"
        A(f"v_mfma_f32_16x16x32_bf16 v[{240+4*(t&1)}:{243+4*(t&1)}], v[{HX+4*t}:{HX+4*t+3}], v[{HB+4*t}:{HB+4*t+3}], {c}")
    A(f"""v_lshlrev_b32 v1, 3, v2
          v_lshrrev_b32 v4, 3, v3
          v_cmp_eq_u32 vcc, 1, v4
          v_mov_b32 v4, 0x01000100
          v_mov_b32 v7, 0x03020302
          v_cndmask_b32 v4, v4, v7, vcc
          s_nop 2
          v_add_f32 v240, v240, v244
          v_add_f32 v241, v241, v245
          v_cvt_pk_bf16_f32 v241, v240, v241
          v_lshlrev_b32 v240, 16, v241
          v_and_b32 v241, 0xffff0000, v241
          v_mul_f32 v242, 0x{f2u(-LOG2E):08x}, v240
          v_mul_f32 v243, 0x{f2u(-LOG2E):08x}, v241
          v_exp_f32 v242, v242
          v_exp_f32 v243, v243
          s_nop 0
          v_add_f32 v242, 1.0, v242
          v_add_f32 v243, 1.0, v243
          v_rcp_f32 v242, v242
          v_rcp_f32 v243, v243
          s_nop 0
          v_cvt_pk_bf16_f32 v243, v242, v243
          v_lshlrev_b32 v242, 16, v243
          v_and_b32 v243, 0xffff0000, v243
          s_nop 1
          v_mul_f32_dpp v242, v240, v242 row_ror:8 {dppf}
          v_mul_f32_dpp v243, v241, v243 row_ror:8 {dppf}
          v_cvt_pk_bf16_f32 v242, v242, v243
          ds_bpermute_b32 v244, v1, v242
          ds_bpermute_b32 v245, v1, v242 offset:4
          s_waitcnt lgkmcnt(0)
          v_perm_b32 v244, v244, v244, v4
          v_perm_b32 v245, v245, v245, v4""")
    for t in range(2):
        for r in range(4): A(f"v_and_b32 v{HB+4*t+r}, v{244+t}, v{HMASK+r}")
    A("s_nop 1")
    for t in range(2):
        for cb in range(4):
            r = HWD + 16 * t + 4 * cb
            A(f"v_mfma_f32_16x16x32_bf16 v[{HDB+4*cb}:{HDB+4*cb+3}], v[{HB+4*t}:{HB+4*t+3}], v[{r}:{r+3}], v[{HDB+4*cb}:{HDB+4*cb+3}]")
    A("s_nop 7")
    for r in range(16): A(f"v_mul_f32 v{HDB+r}, v{HDB+r}, v{HG+1}")
    A("L_noglu:")
    A(f"""v_lshrrev_b32 v1, 3, v3
          v_lshlrev_b32 v1, 7, v1
          v_and_b32 v4, 7, v3
          v_add_u32 v1, v1, v4
          v_lshlrev_b32 v6, 11, v1
          v_lshl_add_u32 v6, v2, 4, v6
          v_add_u32 v8, 0x4000, v6
          v_lshlrev_b32 v7, 7, v1
          s_lshl_b32 s57, s45, 15
          s_lshl_b32 s58, s44, 6
          s_add_u32 s57, s57, s58
          s_add_u32 s57, s57, {W_O}
          s_lshl_b32 s58, s45, 11
          s_lshr_b32 s59, s44, 4
          s_lshl_b32 s59, s59, 3
          s_add_u32 s58, s58, s59
          s_add_u32 s58, s58, {W_ML}
          s_mov_b32 s52, 0x{f2u(LOG2E/16):08x}""")
    A(f"""v_lshrrev_b32 v1, 1, v2
          v_mul_u32_u24 v1, 112, v1
          v_lshl_add_u32 v1, v3, 1, v1
          v_and_b32 v4, 1, v2
          v_add_u32 v1, v1, v4""")
    if lay2 == 1:
        A(f"""v_lshlrev_b32 v9, 12, v1
              v_add_u32 v10, {32*4096}, v9
              v_add_u32 v11, {64*4096}, v9
              v_add_u32 v12, {96*4096}, v9
              s_lshl_b32 s54, s2, 4
              s_add_u32 s54, s54, {W_A}
              v_mov_b32 v13, v5
              v_add_u32 v14, 1024, v5
              v_add_u32 v15, 2048, v5
              v_add_u32 v16, 3072, v5
              s_lshl_b32 s55, s2, 12
              s_add_u32 s55, s55, {W_A}""")
    else:
        A(f"""v_lshlrev_b32 v9, 4, v1
              v_add_u32 v10, {32*16}, v9
              v_add_u32 v11, {64*16}, v9
              v_add_u32 v12, {96*16}, v9
              s_lshl_b32 s54, s2, 12
              s_add_u32 s54, s54, {W_A}
              v_lshlrev_b32 v13, 12, v0
              v_add_u32 v14, {64*4096}, v13
              v_add_u32 v15, {128*4096}, v13
              v_add_u32 v16, {192*4096}, v13
              s_lshl_b32 s55, s2, 4
              s_add_u32 s55, s55, {W_A}""")
    A(f"""s_mov_b32 s32, s24
          s_mov_b32 s33, s25
          s_mov_b32 s34, 1792
          s_lshl_b32 s56, s2, 3
          s_mov_b32 s59, {spin}
          s_waitcnt vmcnt(0)""")
    stamp(4)
    A("s_barrier")
    stamp(5)
    A(f"""L_p1:
          buffer_load_dwordx2 v[20:21], v7, s[40:43], s58 offen sc1
          buffer_load_dwordx2 v[22:23], v7, s[40:43], s58 offen offset:1024 sc1
          buffer_load_dwordx4 v[24:27], v6, s[40:43], s57 offen sc1
          buffer_load_dwordx4 v[28:31], v8, s[40:43], s57 offen sc1
          s_sub_u32 s59, s59, 1
          s_cbranch_scc1 L_p1ok
          s_waitcnt vmcnt(0)
          v_max3_u32 v32, v20, v21, v22
          v_max3_u32 v33, v23, v24, v25
          v_max3_u32 v34, v26, v27, v28
          v_max3_u32 v35, v29, v30, v31
          v_max3_u32 v32, v32, v33, v34
          v_max_u32 v32, v32, v35
          v_cmp_eq_u32 vcc, -1, v32
          s_cbranch_vccnz L_p1
          L_p1ok:
          s_waitcnt vmcnt(0)""")
    stamp(6)
    red = ("quad_perm:[1,0,3,2]", "quad_perm:[2,3,0,1]", "row_half_mirror")
    A("v_max_f32 v32, v20, v22")
    for d in red: A(f"s_nop 1\nv_max_f32_dpp v32, v32, v32 {d} {dppf}")
    A("""v_sub_f32 v20, v20, v32
         v_sub_f32 v22, v22, v32
         v_mul_f32 v20, s52, v20
         v_mul_f32 v22, s52, v22
         v_exp_f32 v20, v20
         v_exp_f32 v22, v22
         s_nop 0
         v_mul_f32 v21, v20, v21""")
    for r in range(4): A(f"v_mul_f32 v{24+r}, v20, v{24+r}")
    A("v_fmac_f32 v21, v22, v23")
    for r in range(4): A(f"v_fmac_f32 v{24+r}, v22, v{28+r}")
    for d in red:
        A(f"v_add_f32_dpp v21, v21, v21 {d} {dppf}")
        for r in range(4): A(f"v_add_f32_dpp v{24+r}, v{24+r}, v{24+r} {d} {dppf}")
    A("v_rcp_f32 v21, v21\ns_nop 0")
    for r in range(4): A(f"v_mul_f32 v{24+r}, v{24+r}, v21")
    for r in range(4): A(f"v_cvt_pk_bf16_f32 v{24+r}, v{24+r}, v{24+r}")
    for t in range(4):
        for r in range(4): A(f"v_and_b32 v{32+4*t+r}, v{24+t}, v{HMASK+r}")
    A("s_nop 0")
    for cb in range(4):
        for t in range(4):
            r = HWO + 16 * t + 4 * cb
            c = "0" if t == 0 else f"v[{48+4*cb}:{51+4*cb}]"
            A(f"v_mfma_f32_16x16x32_bf16 v[{48+4*cb}:{51+4*cb}], v[{32+4*t}:{35+4*t}], v[{r}:{r+3}], {c}")
    for cb in range(4):
        if cb == 0: A("s_nop 0")
        if cb == 3: A("s_mov_b32 exec_lo, 0x00ff00ff\ns_mov_b32 exec_hi, 0x00ff00ff")
        for r in range(4): A(f"v_fmac_f32 v{HDB+4*cb+r}, v{HG}, v{48+4*cb+r}")
        A(f"buffer_store_dwordx4 v[{HDB+4*cb}:{HDB+4*cb+3}], v{9+cb}, s[40:43], s54 offen sc1")
    A("s_mov_b64 exec, -1")
    stamp(7)
    A(f"""s_cmp_ge_u32 s2, 224
          s_cbranch_scc1 L_hdone
          s_mov_b32 s59, {spin}
          L_p2:""")
    for k in range(4):
        A(f"buffer_load_dwordx4 v[{20+4*k}:{23+4*k}], v{13+k}, s[40:43], s55 offen sc1")
    A("""s_sub_u32 s59, s59, 1
         s_cbranch_scc1 L_p2ok
         s_waitcnt vmcnt(0)
         v_max3_u32 v36, v20, v21, v22
         v_max3_u32 v37, v23, v24, v25
         v_max3_u32 v38, v26, v27, v28
         v_max3_u32 v39, v29, v30, v31
         v_max3_u32 v40, v32, v33, v34
         v_max3_u32 v36, v36, v37, v35
         v_max3_u32 v38, v38, v39, v40
         v_max_u32 v36, v36, v38
         v_cmp_eq_u32 vcc, -1, v36
         s_cbranch_vccnz L_p2
         L_p2ok:
         s_waitcnt vmcnt(0)""")
    stamp(8)
    for r in range(4): A(f"v_add_f32 v{20+r}, v{20+r}, v{24+r}")
    for r in range(4): A(f"v_add_f32 v{28+r}, v{28+r}, v{32+r}")
    for r in range(4): A(f"v_add_f32 v{20+r}, v{20+r}, v{28+r}")
    for d in red + ("row_mirror",):
        for r in range(4): A(f"v_add_f32_dpp v{20+r}, v{20+r}, v{20+r} {d} {dppf}")
    A("""s_nop 0
         v_permlane32_swap_b32 v20, v22
         v_permlane32_swap_b32 v21, v23
         v_add_f32 v20, v20, v22
         v_add_f32 v21, v21, v23
         v_mov_b32 v22, v20
         v_mov_b32 v23, v21
         s_nop 0
         v_permlane16_swap_b32 v20, v22
         v_permlane16_swap_b32 v21, v23
         v_add_f32 v20, v20, v22
         v_add_f32 v21, v21, v23
         v_cvt_pk_bf16_f32 v20, v20, v21
         v_lshrrev_b32 v1, 3, v0
         s_mov_b32 exec_lo, 1
         s_mov_b32 exec_hi, 1
         buffer_store_dword v20, v1, s[32:35], s56 offen
         s_cmp_eq_u32 s2, 0
         s_cbranch_scc0 L_hdone
         s_mov_b64 exec, 1
         v_mov_b32 v20, s46
         buffer_store_dword v20, v1, s[40:43], 0 offen sc1""")
    A("L_hdone:")
    stamp(9)
    dump(10)
    A("L_end:")
    A("s_endpgm")
    L.append('.section .rodata,"a"')
    L.append(".p2align 6")
    L.append(f".amdhsa_kernel {KNAME}")
    L.append("""  .amdhsa_next_free_vgpr 256
  .amdhsa_next_free_sgpr 96
  .amdhsa_accum_offset 256
  .amdhsa_group_segment_fixed_size 0
  .amdhsa_kernarg_size 104
  .amdhsa_user_sgpr_count 2
  .amdhsa_user_sgpr_kernarg_segment_ptr 1
  .amdhsa_system_sgpr_workgroup_id_x 1
.end_amdhsa_kernel""")
    return "\n".join(L) + "\n"

if __name__ == "__main__":
    kw = json.loads(sys.argv[1]) if len(sys.argv) > 1 else {}
    sys.stdout.write(gen(**kw))
```

```python
import sys, json, struct
KNAME = "gated_mix__gqa_block_cached__glu_gated_glu__decode_kernel"

HEADER = """; Kernarg layout for this problem (104 bytes, ptrs only, base s[0:1]):
"""

W_EPOCH = 0
W_CNT   = 0x1000
W_Q     = 0x8000
W_G     = 0x30000
W_A     = 0x50000
W_R     = 0x60000
W_O     = 0x80000
W_DBG   = 0x400000
W_SIZE  = 0x800000

L_X   = 0
L_W   = 2048
L_Q   = 16384
L_ML  = 17408
L_F   = 17472
L_GT  = 17536
L_H   = 17664
L_P   = 18432
L_R   = 26624
LDS_SIZE = 30720

NH, NS = 8, 12
LOG2E = 1.4426950408889634
def f2u(x): return struct.unpack("<I", struct.pack("<f", x))[0]
dppf = "row_mask:0xf bank_mask:0xf"

def gen(NB=4, S=24, dbg=0, spin=200000, atom_early=1, noglu=0, probe=0, wearly=0, align=0, WIN=4, vlate=0, prio=0, nocomp=0, now=0, nohelp=0, rpos=0, fine=0, xnt=0, sfl='sc1', short=0, idle=0, maskpoll=1, wqfirst=1, burst=0, norst=0, hexit=0, wpos=0, osc='', hpad=1):
    L = []
    def A(s):
        for line in s.split("\n"):
            line = line.strip()
            if line: L.append(("" if line.endswith(":") else "    ") + line)
    U = (32 - S) * 16
    D = (32 - S) * 4
    def stamp(k):
        if dbg: A(f"s_memrealtime s[{68+2*k}:{69+2*k}]")
    def dump(n):
        if not dbg: return
        A("s_waitcnt lgkmcnt(0)")
        A("s_mul_i32 s60, s2, 5\ns_add_u32 s60, s60, s3\ns_lshl_b32 s60, s60, 6")
        A(f"s_add_u32 s60, s60, {W_DBG}")
        A("s_mov_b64 exec, 1")
        A("v_mov_b32 v1, 0")
        for k in range(n):
            A(f"v_mov_b32 v2, s{68+2*k}")
            A(f"buffer_store_dword v2, v1, s[40:43], s60 offen offset:{4*k}")
        A("s_getreg_b32 s61, hwreg(HW_REG_XCC_ID)")
        A("v_mov_b32 v2, s61")
        A("buffer_store_dword v2, v1, s[40:43], s60 offen offset:60")
        A("v_mov_b32 v2, s46")
        A("buffer_store_dword v2, v1, s[40:43], s60 offen offset:56")
    def lg(n): return 0 if dbg else n

    L.append(HEADER.rstrip())
    L.append(f"; @launch grid=(256,1,1) block=(320,1,1) lds={LDS_SIZE}")
    L.append('.amdgcn_target "amdgcn-amd-amdhsa--gfx950"')
    L.append(".text")
    L.append(f".globl {KNAME}")
    if align:
        L.append(".p2align 12")
        L.append(f".fill {(4096-768)//4}, 4, 0xbf810000")
    L.append(".p2align 8")
    L.append(f".type {KNAME},@function")
    L.append(f"{KNAME}:")
    A("s_cmp_ge_u32 s2, 256")
    A("s_cbranch_scc1 L_end")
    stamp(0)
    if dbg:
        for k in range(1, 12): A(f"s_mov_b32 s{68+2*k}, 0")
    A("""s_load_dwordx16 s[4:19], s[0:1], 0
         s_load_dwordx8 s[20:27], s[0:1], 64
         s_load_dwordx2 s[28:29], s[0:1], 96
         v_lshrrev_b32 v1, 6, v0
         v_and_b32 v0, 63, v0
         v_readfirstlane_b32 s3, v1
         v_lshrrev_b32 v2, 4, v0
         v_and_b32 v3, 15, v0
         s_mov_b32 s35, 0x20000
         s_mov_b32 s39, 0x20000
         s_mov_b32 s43, 0x20000""")
    A(f"s_mov_b32 s42, {W_SIZE}")
    A("""s_and_b32 s30, s2, 7
         s_lshr_b32 s31, s2, 7
         s_lshl_b32 s66, s31, 4
         s_lshl_b32 s31, s31, 1
         s_bfe_u32 s64, s2, 0x10003
         s_add_u32 s31, s31, s64
         s_and_b32 s64, s2, 15
         s_add_u32 s66, s66, s64
         s_bfe_u32 s64, s2, 0x30004
         s_lshl_b32 s65, s64, 3
         s_add_u32 s65, s65, s30""")
    A("s_cmp_eq_u32 s3, 0")
    A("s_cbranch_scc0 L_stream")
    if prio: A(f"s_setprio {prio}")
    A(f"""v_mov_b32 v1, 0
          v_lshrrev_b32 v13, 3, v0
          ds_write_b32 v1, v1 offset:{L_F}
          v_and_b32 v12, 6, v13
          v_xor_b32 v12, v12, v0
          v_and_b32 v12, 7, v12
          v_lshlrev_b32 v12, 4, v12
          v_lshl_add_u32 v4, v13, 13, v12
          v_lshlrev_b32 v5, 4, v0
          s_mul_i32 s48, s31, {112*8192}
          s_lshl_b32 s44, s65, 7
          s_add_u32 s48, s48, s44
          s_mov_b32 s34, 1792
          s_mov_b32 s38, 3670016""")
    A("""s_waitcnt lgkmcnt(0)
         s_mov_b32 s36, s10
         s_mov_b32 s37, s11
         s_mov_b32 s32, s4
         s_mov_b32 s33, s5""")
    def tile_dma(srd, rowb):
        for t in range(14):
            A(f"s_mov_b32 m0, {L_W + 1024*t}")
            if t: A(f"s_add_u32 s48, s48, {8*rowb}")
            else: A("s_nop 0")
            A(f"buffer_load_dwordx4 v4, s[{srd}:{srd+3}], s48 offen nt lds")
    A(f"s_mov_b32 m0, {L_X}")
    A("s_nop 0")
    A(f"buffer_load_dwordx4 v5, s[32:35], 0 offen {'nt' if xnt else ''} lds")
    A(f"buffer_load_dwordx4 v5, s[32:35], 0 offen offset:1024 {'nt' if xnt else ''} lds")
    if not nohelp: tile_dma(36, 8192)
    A("""s_barrier
         s_load_dword s46, s[28:29], 0
         s_mov_b32 s40, s28
         s_mov_b32 s41, s29
         s_branch L_helper""")

    VK, VV = 4, 5
    VQ = 8
    VMASK = 16
    VACC = 20
    VM, VMC, VL = 28, 29, 30
    VWA = 31
    VS = 32
    VA = 40
    VT = 48
    VW = 56
    VB = 80
    def buf(n): return VB + 32 * n
    A("L_stream:")
    A(f"""v_lshrrev_b32 v{VK}, 2, v3
          v_lshlrev_b32 v{VK}, 9, v{VK}
          v_lshl_add_u32 v{VK}, v2, 6, v{VK}
          v_and_b32 v6, 3, v3
          v_lshl_add_u32 v{VK}, v6, 4, v{VK}
          v_lshlrev_b32 v{VV}, 9, v2
          v_lshl_add_u32 v{VV}, v3, 4, v{VV}
          s_sub_u32 s44, s3, 1
          s_lshl_b32 s45, s2, 19
          s_lshl_b32 s47, s44, 12
          s_add_u32 s45, s45, s47
          s_mov_b32 s34, 0x8000000
          s_mov_b32 s38, 0x8000000
          s_waitcnt lgkmcnt(0)
          s_mov_b32 s32, s6
          s_mov_b32 s33, s7
          s_mov_b32 s36, s8
          s_mov_b32 s37, s9""")
    offs = [0, 256, 2048, 2304]
    def issueK(n):
        b = buf(n)
        for m in range(4):
            A(f"buffer_load_dwordx4 v[{b+4*m}:{b+4*m+3}], v{VK}, s[32:35], s45 offen offset:{offs[m]} nt")
    def issueV(n):
        b = buf(n)
        for m in range(4):
            A(f"buffer_load_dwordx4 v[{b+16+4*m}:{b+16+4*m+3}], v{VV}, s[36:39], s45 offen offset:{offs[m]} nt")
    if wqfirst: A("s_barrier")
    issueK(0)
    if not vlate: issueV(0)
    A(f"""s_load_dword s67, s[28:29], 0
          s_mov_b32 s40, s28
          s_mov_b32 s41, s29
          s_lshr_b32 s47, s2, 4
          s_lshl_b32 s48, s47, 2
          s_add_u32 s48, s48, s44
          s_lshl_b32 s48, s48, 8
          s_add_u32 s48, s48, {W_CNT}
          s_add_u32 s50, s28, s48
          s_addc_u32 s51, s29, 0
          s_lshl_b32 s47, s47, 23
          s_lshl_b32 s48, s44, 21
          s_add_u32 s47, s47, s48
          s_add_u32 s47, s47, {S*4*4096}
          s_mov_b32 s46, {NB}
          s_mov_b32 s49, {NB-1}
          s_mov_b32 s52, 0x{f2u(LOG2E/16):08x}
          s_mov_b32 s53, 0
          s_mov_b32 s4, s12
          s_mov_b32 s5, s13
          s_mov_b32 s6, 3670016
          s_mov_b32 s7, 0x20000
          s_mov_b32 s8, s20
          s_mov_b32 s9, s21
          s_mov_b32 s10, 1605632
          s_mov_b32 s11, 0x20000
          s_lshl_b32 s12, s65, 2
          s_add_u32 s12, s12, s44
          s_mul_i32 s12, s12, {16*896}
          s_lshl_b32 s48, s31, 8
          s_add_u32 s12, s12, s48
          s_mul_i32 s13, s65, {28*896}
          s_add_u32 s13, s13, s48
          s_mul_i32 s48, s44, {8*896}
          s_add_u32 s13, s13, s48
          s_cmp_eq_u32 s31, 3
          s_cselect_b32 s14, 0x00ff00ff, -1
          s_mov_b32 s15, s14""")
    A(f"""v_mul_u32_u24 v{VWA}, {4*896}, v2
          v_lshl_add_u32 v{VWA}, v3, 4, v{VWA}
          v_mul_u32_u24 v1, 896, v2
          v_lshl_add_u32 v1, v3, 4, v1""")
    A(f"""v_and_b32 v6, 1, v3
          v_cmp_eq_u32 vcc, 1, v6
          v_mov_b32 v7, 0xffff
          v_mov_b32 v{VT}, 0xffff0000
          v_cndmask_b32 v7, v7, v{VT}, vcc
          v_bfe_u32 v6, v3, 1, 2""")
    for r in range(4):
        A(f"""v_cmp_eq_u32 vcc, {r}, v6
              s_nop 1
              v_cndmask_b32 v{VMASK+r}, 0, v7, vcc""")
    for r in range(8): A(f"v_mov_b32 v{VACC+r}, 0")
    A(f"""v_mov_b32 v{VM}, 0xff7fffff
          v_mov_b32 v{VMC}, 0
          v_mov_b32 v{VL}, 0""")
    A(f"""v_lshrrev_b32 v6, 3, v3
          v_lshlrev_b32 v6, 9, v6
          v_lshl_add_u32 v6, v2, 6, v6
          v_and_b32 v{VT}, 3, v3
          v_lshl_add_u32 v6, v{VT}, 4, v6
          v_lshrrev_b32 v7, 1, v2
          v_lshlrev_b32 v7, 10, v7
          v_lshl_add_u32 v7, v3, 5, v7
          v_and_b32 v{VT}, 1, v2
          v_lshl_add_u32 v7, v{VT}, 4, v7
          s_lshl_b32 s48, s44, 11
          v_add_u32 v7, s48, v7""")
    A(f"""s_lshl_b32 s48, s44, 3
          v_lshrrev_b32 v240, 3, v0
          v_lshlrev_b32 v240, 5, v240
          v_add_u32 v240, s48, v240
          s_lshl_b32 s16, s64, 16
          s_lshl_b32 s48, s66, 8
          s_add_u32 s16, s16, s48
          s_lshl_b32 s48, s44, 15
          s_add_u32 s16, s16, s48
          s_add_u32 s16, s16, {W_O}
          s_lshl_b32 s48, s44, 10
          v_lshl_add_u32 v242, v0, 4, s48
          s_lshl_b32 s48, s44, 5
          v_mov_b32 v241, s48
          v_lshlrev_b32 v243, 13, v2
          v_lshl_add_u32 v243, v3, 4, v243""")
    A(f"""v_and_b32 v244, 8, v3
          v_add_u32 v244, v244, v3
          v_lshlrev_b32 v244, 8, v244
          s_lshl_b32 s48, s44, 6
          v_lshl_add_u32 v245, v2, 4, v244
          v_add_u32 v245, s48, v245
          s_lshl_b32 s17, s65, 13
          s_add_u32 s17, s17, {W_O}""")
    A(f"""v_lshrrev_b32 v246, 3, v3
          v_mul_u32_u24 v246, 28, v246
          v_add_u32 v246, v246, v2
          s_lshl_b32 s48, s44, 5
          v_lshl_add_u32 v246, v246, 2, s48
          v_lshrrev_b32 v247, 1, v2
          v_lshlrev_b32 v248, 9, v247
          v_lshlrev_b32 v247, 3, v247
          v_lshl_add_u32 v248, v3, 5, v248
          v_and_b32 v249, 1, v2
          v_lshl_add_u32 v248, v249, 4, v248
          s_lshl_b32 s48, s44, 10
          v_add_u32 v248, s48, v248
          v_and_b32 v251, 7, v3
          v_lshl_add_u32 v251, v2, 3, v251
          s_lshl_b32 s48, s44, 7
          v_lshl_add_u32 v249, v251, 2, s48
          v_lshlrev_b32 v251, 1, v251
          v_lshlrev_b32 v250, 7, v2
          v_lshl_add_u32 v250, v3, 2, v250
          s_lshl_b32 s18, s31, 12
          s_lshl_b32 s48, s44, 9
          s_add_u32 s18, s18, s48
          s_add_u32 s18, s18, {W_A}
          s_lshl_b32 s19, s31, 8
          s_lshl_b32 s48, s44, 6
          s_add_u32 s19, s19, s48
          s_mov_b32 s20, s24
          s_mov_b32 s21, s25
          s_mov_b32 s22, 1792
          s_mov_b32 s23, 0x20000""")
    if not wqfirst: A("s_barrier")
    if vlate: issueV(0)
    def issueW():
        A("s_mov_b64 exec, s[14:15]")
        for t in range(4):
            A(f"buffer_load_dwordx4 v[{VW+4*t}:{VW+4*t+3}], v{VWA}, s[4:7], s12 offen offset:{896*t} nt")
        for t in range(2):
            A(f"buffer_load_dwordx4 v[{VW+16+4*t}:{VW+16+4*t+3}], v1, s[8:11], s13 offen offset:{3584*t} nt")
        A("s_mov_b64 exec, -1")
    for n in range(1, NB):
        A("s_add_u32 s45, s45, 16384")
        A(f"s_waitcnt vmcnt({0 if burst else WIN})")
        if n == 1: stamp(1)
        issueK(n)
        if not burst: A(f"s_waitcnt vmcnt({WIN})")
        if wearly and n == NB - 1: issueW(); A(f"s_waitcnt vmcnt({WIN})")
        issueV(n)
    stamp(2)
    A(f"""s_mov_b32 s59, {spin*8}
          L_qwait:
          ds_read_b32 v{VT}, v{VL} offset:{L_F}
          s_sub_u32 s59, s59, 1
          s_cbranch_scc1 L_qgo
          s_waitcnt lgkmcnt(0)
          v_cmp_eq_u32 vcc, 0, v{VT}
          s_cbranch_vccnz L_qwait
          L_qgo:""")
    A(f"ds_read_b128 v[{VQ}:{VQ+3}], v6 offset:{L_Q}")
    A(f"ds_read_b128 v[{VQ+4}:{VQ+7}], v6 offset:{L_Q+256}")
    stamp(3)
    A("s_waitcnt lgkmcnt(0)")
    A("s_add_u32 s67, s67, 0x01010101")
    def qk(n):
        if nocomp: return
        b = buf(n)
        A(f"""v_mfma_f32_16x16x32_bf16 v[{VS}:{VS+3}], v[{b}:{b+3}], v[{VQ}:{VQ+3}], 0
              v_mfma_f32_16x16x32_bf16 v[{VS+4}:{VS+7}], v[{b+8}:{b+11}], v[{VQ}:{VQ+3}], 0
              v_mfma_f32_16x16x32_bf16 v[{VS}:{VS+3}], v[{b+4}:{b+7}], v[{VQ+4}:{VQ+7}], v[{VS}:{VS+3}]
              v_mfma_f32_16x16x32_bf16 v[{VS+4}:{VS+7}], v[{b+12}:{b+15}], v[{VQ+4}:{VQ+7}], v[{VS+4}:{VS+7}]
              s_nop 6
              v_mov_b32_dpp v{VT}, v{VS} quad_perm:[0,0,0,0] {dppf}
              v_mov_b32_dpp v{VT+1}, v{VS+4} quad_perm:[0,0,0,0] {dppf}
              v_mov_b32_dpp v{VT+2}, v{VS+2} quad_perm:[2,2,2,2] {dppf}
              v_mov_b32_dpp v{VT+3}, v{VS+6} quad_perm:[2,2,2,2] {dppf}
              v_add_f32_dpp v{VT}, v{VS+1}, v{VT} quad_perm:[1,1,1,1] {dppf}
              v_add_f32_dpp v{VT+1}, v{VS+5}, v{VT+1} quad_perm:[1,1,1,1] {dppf}
              v_add_f32_dpp v{VT+2}, v{VS+3}, v{VT+2} quad_perm:[3,3,3,3] {dppf}
              v_add_f32_dpp v{VT+3}, v{VS+7}, v{VT+3} quad_perm:[3,3,3,3] {dppf}
              v_add_f32 v{VT}, v{VT}, v{VT+2}
              v_add_f32 v{VT+1}, v{VT+1}, v{VT+3}
              v_cvt_pk_bf16_f32 v{VT+1}, v{VT}, v{VT+1}
              v_lshlrev_b32 v{VT}, 16, v{VT+1}
              v_and_b32 v{VT+1}, 0xffff0000, v{VT+1}
              v_max_f32 v{VT+2}, v{VT}, v{VT+1}
              v_cmp_gt_f32 vcc, v{VT+2}, v{VM}
              s_cbranch_vccz L_nomax{n}""")
        A(f"""v_max_f32 v{VT+2}, v{VT+2}, v{VM}
              v_mov_b32 v{VT+3}, v{VT+2}
              s_nop 1
              v_permlane16_swap_b32 v{VT+2}, v{VT+3}
              v_max_f32 v{VT+2}, v{VT+2}, v{VT+3}
              v_mov_b32 v{VT+3}, v{VT+2}
              s_nop 1
              v_permlane32_swap_b32 v{VT+2}, v{VT+3}
              v_max_f32 v{VT+2}, v{VT+2}, v{VT+3}
              v_sub_f32 v{VT+3}, v{VM}, v{VT+2}
              v_mul_f32 v{VT+3}, s52, v{VT+3}
              v_exp_f32 v{VT+3}, v{VT+3}
              v_mov_b32 v{VM}, v{VT+2}
              v_mul_f32 v{VMC}, s52, v{VT+2}
              v_mul_f32 v{VL}, v{VL}, v{VT+3}
              v_mov_b32 v{VT+4}, v{VT+3}
              s_nop 1
              v_mov_b32_dpp v{VT+4}, v{VT+3} row_ror:8 row_mask:0x3 bank_mask:0xc
              s_nop 1
              v_mov_b32_dpp v{VT+4}, v{VT+3} row_ror:8 row_mask:0xc bank_mask:0x3""")
        for r in range(8): A(f"v_mul_f32 v{VACC+r}, v{VACC+r}, v{VT+4}")
        A(f"L_nomax{n}:")
        A(f"""v_fma_f32 v{VT}, v{VT}, s52, -v{VMC}
              v_fma_f32 v{VT+1}, v{VT+1}, s52, -v{VMC}
              v_exp_f32 v{VT}, v{VT}
              v_exp_f32 v{VT+1}, v{VT+1}
              v_cvt_pk_bf16_f32 v{VT+2}, v{VT}, v{VT}
              v_add_f32 v{VL}, v{VL}, v{VT}
              v_cvt_pk_bf16_f32 v{VT+3}, v{VT+1}, v{VT+1}""")
        for r in range(4): A(f"v_and_b32 v{VA+r}, v{VT+2}, v{VMASK+r}")
        for r in range(4): A(f"v_and_b32 v{VA+4+r}, v{VT+3}, v{VMASK+r}")
        A(f"v_add_f32 v{VL}, v{VL}, v{VT+1}")
    def pv(n):
        if nocomp: return
        b = buf(n)
        A(f"""v_mfma_f32_16x16x32_bf16 v[{VACC}:{VACC+3}], v[{VA}:{VA+3}], v[{b+16}:{b+19}], v[{VACC}:{VACC+3}]
              v_mfma_f32_16x16x32_bf16 v[{VACC+4}:{VACC+7}], v[{VA}:{VA+3}], v[{b+20}:{b+23}], v[{VACC+4}:{VACC+7}]
              v_mfma_f32_16x16x32_bf16 v[{VACC}:{VACC+3}], v[{VA+4}:{VA+7}], v[{b+24}:{b+27}], v[{VACC}:{VACC+3}]
              v_mfma_f32_16x16x32_bf16 v[{VACC+4}:{VACC+7}], v[{VA+4}:{VA+7}], v[{b+28}:{b+31}], v[{VACC+4}:{VACC+7}]""")
    def ticket_req(n):
        A(f"""s_cmp_lt_u32 s46, {S}
              s_cbranch_scc1 L_noat{n}""")
        if (n + 2) % NB == S % NB:
            A(f"""s_cmp_eq_u32 s46, {S}
                  s_cbranch_scc1 L_f2wait
                  L_f2go:""")
        A("""s_mov_b32 s53, 1
             s_atomic_add s53, s[50:51], 0 glc""")
        A(f"L_noat{n}:")
    magic = (65536 + D - 1) // D
    assert all((u * magic) >> 16 == u // D for u in range(U))
    nW = 0 if (wearly or now or wpos) else 6
    for n in range(NB):
        A(f"L_step{n}:")
        A(f"""s_cmp_eq_u32 s49, 0
              s_cbranch_scc0 L_a{n}
              s_add_u32 s45, s45, 16384
              s_cmp_lt_u32 s46, {S}
              s_cbranch_scc1 L_go{n}
              s_waitcnt lgkmcnt(0)
              s_cmp_ge_u32 s53, {0 if short else U}
              s_cbranch_scc1 L_dry{n}
              s_mul_i32 s54, s53, {magic}
              s_lshr_b32 s54, s54, 16
              s_mul_i32 s55, s54, {128 - D}
              s_add_u32 s55, s55, s53
              s_lshl_b32 s55, s55, 12
              s_add_u32 s45, s55, s47""")
        A(f"L_go{n}:")
        A("s_add_u32 s46, s46, 1")
        A(f"s_waitcnt vmcnt({0 if burst else WIN})")
        issueK((n + 1) % NB)
        if burst: issueV((n + 1) % NB)
        if atom_early: ticket_req(n)
        A(f"L_a{n}:")
        qk(n)
        A(f"""s_cmp_eq_u32 s49, 0
              s_cbranch_scc0 L_skip{n}""")
        if not burst:
            A(f"s_waitcnt vmcnt({WIN})")
            issueV((n + 1) % NB)
        if not atom_early: ticket_req(n)
        A(f"L_b{n}:")
        pv(n)
        if n == NB - 1: A("s_branch L_step0")
    A(f"""L_f2wait:
          s_mov_b32 s59, {spin*8}
          v_mov_b32 v{VT+6}, 0
          L_f2w:
          ds_read_b32 v{VT+7}, v{VT+6} offset:{L_F}
          s_sub_u32 s59, s59, 1
          s_cbranch_scc1 L_f2go
          s_waitcnt lgkmcnt(0)
          v_cmp_ne_u32 vcc, 2, v{VT+7}
          s_cbranch_vccnz L_f2w
          s_branch L_f2go""")
    for n in range(NB):
        A(f"""L_dry{n}:
              s_mov_b32 s49, -1
              s_waitcnt vmcnt({WIN})""")
        if n == 0: pass
        if not wearly and not now and not wpos: issueW()
        A(f"""s_branch L_a{n}
              L_skip{n}:
              s_sub_u32 s49, s49, 1
              s_cmp_ge_i32 s49, 0
              s_cbranch_scc1 L_b{n}
              s_waitcnt vmcnt({nW})""")
        pv(n)
        if n < NB - 1: A("s_branch L_tail")
    A("L_tail:")
    stamp(4)
    A(f"""v_mov_b32 v{VT}, v{VL}
          s_mov_b32 s59, {spin}
          s_nop 0
          v_permlane16_swap_b32 v{VL}, v{VT}
          v_add_f32 v{VL}, v{VL}, v{VT}
          v_mov_b32 v{VT}, v{VL}
          s_nop 1
          v_permlane32_swap_b32 v{VL}, v{VT}
          v_add_f32 v{VMC}, v{VL}, v{VT}
          ds_write_b128 v7, v[{VACC}:{VACC+3}] offset:{L_P}
          ds_write_b128 v7, v[{VACC+4}:{VACC+7}] offset:{L_P+512}
          s_mov_b64 exec, 0x101
          ds_write_b64 v240, v[{VM}:{VM+1}] offset:{L_ML}
          s_mov_b64 exec, -1
          s_waitcnt lgkmcnt(0)""")
    if idle:
        A(f"""s_and_b32 s92, s68, 0xffffff80
              s_add_u32 s92, s92, {idle}
              L_idle:
              s_memrealtime s[94:95]
              s_waitcnt lgkmcnt(0)
              s_sub_u32 s93, s94, s92
              s_cmp_lt_i32 s93, 0
              s_cbranch_scc1 L_idle""")
    A("s_barrier")
    stamp(5)
    A(f"""s_cmp_ge_u32 s44, 2
          s_cbranch_scc1 L_pub_done
          ds_read_b128 v[32:35], v241 offset:{L_ML}
          ds_read_b128 v[36:39], v241 offset:{L_ML+16}""")
    for w in range(4):
        A(f"ds_read_b128 v[{80+4*w}:{83+4*w}], v242 offset:{L_P + 2048*w}")
    A(f"""v_mov_b32 v47, s67
          s_waitcnt lgkmcnt({lg(4)})
          v_max3_f32 v40, v32, v34, v36
          v_max_f32 v40, v40, v38
          v_mul_f32 v40, s52, v40
          v_fma_f32 v32, v32, s52, -v40
          v_fma_f32 v34, v34, s52, -v40
          v_fma_f32 v36, v36, s52, -v40
          v_fma_f32 v38, v38, s52, -v40
          v_exp_f32 v32, v32
          v_exp_f32 v34, v34
          v_exp_f32 v36, v36
          v_exp_f32 v38, v38
          v_mul_f32 v41, v32, v33
          v_fmac_f32 v41, v34, v35
          v_fmac_f32 v41, v36, v37
          v_fmac_f32 v41, v38, v39
          v_rcp_f32 v42, v41
          v_log_f32 v41, v41
          s_waitcnt lgkmcnt(0)""")
    for r in range(4): A(f"v_mul_f32 v{80+r}, v32, v{80+r}")
    for w in range(1, 4):
        for r in range(4): A(f"v_fmac_f32 v{80+r}, v{32+2*w}, v{80+4*w+r}")
    A("v_add_f32 v46, v40, v41")
    for r in range(4): A(f"v_mul_f32 v{80+r}, v{80+r}, v42")
    A("""v_cvt_pk_bf16_f32 v44, v80, v81
         v_cvt_pk_bf16_f32 v45, v82, v83
         buffer_store_dwordx4 v[44:47], v243, s[40:43], s16 offen sc1
         L_pub_done:""")
    stamp(6)
    if wpos == 1: issueW()
    A(f"""ds_read_b32 v96, v246 offset:{L_H}
          ds_read_b32 v97, v246 offset:{L_H+16}
          ds_read_b64 v[98:99], v247 offset:{L_GT}
          buffer_load_dwordx4 v[20:23], v245, s[40:43], s17 offen sc1
          buffer_load_dwordx4 v[24:27], v245, s[40:43], s17 offen offset:2048 sc1
          s_waitcnt lgkmcnt(0)""")
    for t in range(2):
        for r in range(4): A(f"v_and_b32 v{100+4*t+r}, v{96+t}, v{VMASK+r}")
    A("s_waitcnt vmcnt(2)")
    stamp(11)
    A(f"""v_mfma_f32_16x16x32_bf16 v[108:111], v[100:103], v[{VW+16}:{VW+19}], 0
          s_cmp_eq_u32 s44, 3
          s_cbranch_scc1 L_p1c
          v_mfma_f32_16x16x32_bf16 v[108:111], v[104:107], v[{VW+20}:{VW+23}], v[108:111]
          s_branch L_p1c""")
    A(f"""L_p1:
          s_mov_b64 exec, s[54:55]
          buffer_load_dwordx4 v[20:23], v245, s[40:43], s17 offen sc1
          buffer_load_dwordx4 v[24:27], v245, s[40:43], s17 offen offset:2048 sc1
          s_sub_u32 s59, s59, 1
          s_cbranch_scc1 L_p1ok
          L_p1c:
          s_waitcnt vmcnt(0)
          v_cmp_ne_u32 vcc, s67, v23
          v_cmp_ne_u32 s[54:55], s67, v27
          s_or_b64 s[54:55], s[54:55], vcc
          s_cbranch_scc1 L_p1
          L_p1ok:
          s_mov_b64 exec, -1
          s_waitcnt vmcnt(0)""")
    stamp(7)
    red = ("quad_perm:[1,0,3,2]", "quad_perm:[2,3,0,1]", "row_half_mirror")
    A("v_max_f32 v32, v22, v26")
    fill = ["v_lshlrev_b32 v28, 16, v24", "v_and_b32 v29, 0xffff0000, v24", "v_lshlrev_b32 v30, 16, v25", "v_and_b32 v31, 0xffff0000, v25",
            "v_lshlrev_b32 v24, 16, v20", "v_and_b32 v25, 0xffff0000, v20"]
    for k, d in enumerate(red):
        A(fill[2*k] + "\n" + fill[2*k+1])
        A(f"v_max_f32_dpp v32, v32, v32 {d} {dppf}")
    A("""v_sub_f32 v20, v22, v32
         v_sub_f32 v22, v26, v32
         v_exp_f32 v20, v20
         v_exp_f32 v22, v22
         v_lshlrev_b32 v26, 16, v21
         v_and_b32 v27, 0xffff0000, v21
         v_add_f32 v21, v20, v22""")
    for r in range(4): A(f"v_mul_f32 v{24+r}, v20, v{24+r}")
    for r in range(4): A(f"v_fmac_f32 v{24+r}, v22, v{28+r}")
    for k, d in enumerate(red):
        A(f"v_add_f32_dpp v21, v21, v21 {d} {dppf}")
        if k == 2: A("v_rcp_f32 v21, v21")
        for r in range(4): A(f"v_add_f32_dpp v{24+r}, v{24+r}, v{24+r} {d} {dppf}")
    for r in range(4): A(f"v_mul_f32 v{24+r}, v{24+r}, v21")
    for r in range(4): A(f"v_cvt_pk_bf16_f32 v{24+r}, v{24+r}, v{24+r}")
    for t in range(4):
        for r in range(4): A(f"v_and_b32 v{32+4*t+r}, v{24+t}, v{VMASK+r}")
        if t >= 1:
            c = "0" if t == 1 else "v[48:51]"
            A(f"v_mfma_f32_16x16x32_bf16 v[48:51], v[{32+4*(t-1)}:{35+4*(t-1)}], v[{VW+4*(t-1)}:{VW+4*(t-1)+3}], {c}")
    A(f"""s_nop 0
          v_mfma_f32_16x16x32_bf16 v[48:51], v[44:47], v[{VW+12}:{VW+15}], v[48:51]""")
    A("""v_cmp_eq_u32 s[60:61], 8, v3
         s_cmp_eq_u32 s31, 3
         s_cselect_b32 s54, 2, 4
         s_nop 0""")
    for r in range(4): A(f"v_mul_f32 v{108+r}, v{108+r}, v99")
    for r in range(4): A(f"v_fmac_f32 v{108+r}, v98, v{48+r}")
    A(f"""ds_write_b128 v248, v[108:111] offset:{L_R}
          s_waitcnt lgkmcnt(0)
          s_barrier""")
    stamp(8)
    A("""s_cmp_ge_u32 s44, s54
         s_cbranch_scc1 L_sdone""")
    for w in range(4):
        A(f"ds_read2st64_b32 v[{20+2*w}:{21+2*w}], v249 offset0:{(L_R + 1024*w)//256} offset1:{(L_R + 1024*w + 512)//256}")
    A(f"""s_mov_b32 exec_lo, 0x01ff01ff
          s_mov_b32 exec_hi, 0x01ff01ff
          s_waitcnt lgkmcnt({lg(2)})
          v_add_f32 v20, v20, v22
          v_add_f32 v21, v21, v23
          s_waitcnt lgkmcnt(0)
          v_add_f32 v24, v24, v26
          v_add_f32 v25, v25, v27
          v_add_f32 v20, v20, v24
          v_add_f32 v21, v21, v25
          v_cndmask_b32 v22, v20, 1.0, s[60:61]
          v_cndmask_b32 v23, v21, 1.0, s[60:61]
          buffer_atomic_add_f32 v22, v250, s[40:43], s18 offen sc0 sc1
          buffer_atomic_add_f32 v23, v250, s[40:43], s18 offen offset:2048 sc0 sc1
          s_mov_b32 s54, 0x427c0000""")
    A("s_waitcnt vmcnt(0)")
    stamp(9)
    A(f"""v_cmp_eq_f32 vcc, s54, v22
         v_cmp_eq_f32 s[58:59], s54, v23
         v_add_f32 v20, v20, v22
         v_add_f32 v21, v21, v23
         s_and_b64 s[56:57], vcc, s[60:61]
         s_and_b64 s[58:59], s[58:59], s[60:61]
         v_cvt_pk_bf16_f32 v20, v20, v21
         s_lshr_b64 s[62:63], s[58:59], 8
         s_sub_u32 exec_lo, s58, s62
         s_sub_u32 exec_hi, s59, s63
         s_cbranch_execz L_no1
         buffer_store_short_d16_hi v20, v251, s[20:23], s19 offen offset:896 {osc}
         L_no1:
         s_lshr_b64 s[62:63], s[56:57], 8
         s_sub_u32 exec_lo, s56, s62
         s_sub_u32 exec_hi, s57, s63
         s_cbranch_execz L_sdone
         buffer_store_short v20, v251, s[20:23], s19 offen {osc}
         s_cmp_eq_u32 s19, 0
         s_cbranch_scc0 L_sdone
         s_bitcmp1_b32 s56, 8
         s_cbranch_scc0 L_sdone
         s_mov_b64 exec, 1
         v_mov_b32 v20, s67
         buffer_store_dword v20, v251, s[40:43], 0 offen sc1""")
    A("L_sdone:")
    stamp(10)
    dump(12)
    A("s_endpgm")

    if hpad:
        L.append(f".fill ((({KNAME} - .) & 4095) >> 2), 4, 0xbf810000")
    A("L_helper:")
    if hexit:
        A(f"""v_mov_b32 v36, 0
              v_mov_b32 v37, 2
              ds_write_b32 v36, v37 offset:{L_F}
              s_waitcnt vmcnt(0) lgkmcnt(0)
              s_branch L_hlast""")
    HX = 16
    HW = 32
    HD = 88
    A(f"""v_lshrrev_b32 v1, 2, v3
          v_lshl_add_u32 v1, v2, 2, v1
          v_lshlrev_b32 v8, 7, v1
          v_and_b32 v6, 3, v3
          v_lshl_add_u32 v8, v6, 3, v8
          v_bfe_u32 v1, v1, 1, 2
          v_lshlrev_b32 v1, 5, v1
          v_add_u32 v8, v8, v1
          v_xor_b32 v9, 32, v8
          v_xor_b32 v10, 64, v8
          v_xor_b32 v11, 0x60, v8
          v_and_b32 v14, 1, v3
          v_mul_u32_u24 v6, 896, v14
          v_lshl_add_u32 v6, v2, 3, v6
          v_bfe_u32 v7, v3, 1, 2
          v_lshl_add_u32 v7, v7, 2, v2
          v_lshlrev_b32 v7, 4, v7
          v_mov_b32 v15, 0xffffff00
          v_and_b32 v1, 2, v3
          v_cmp_ne_u32 s[60:61], 0, v1
          v_and_b32 v1, 4, v3
          v_cmp_ne_u32 s[62:63], 0, v1
          s_waitcnt lgkmcnt(0)
          s_add_u32 s46, s46, 0x01010101
          s_and_b32 s50, s46, 0xff
          s_bfe_u32 s51, s46, 0x80008
          s_bfe_u32 s52, s46, 0x80010
          s_lshr_b32 s53, s46, 24""")
    def tile_compute(rbreg, bstride, soff):
        A(f"""s_mul_i32 s44, {rbreg}, 224
              v_add_u32 v1, s44, v6
              v_mov_b32 v104, {bstride}
              v_mad_u32_u24 v104, v104, v14, v7
              s_waitcnt vmcnt(0)""")
        for k in range(7):
            A(f"ds_read_b64 v[{HX+2*k}:{HX+2*k+1}], v1 offset:{L_X + 32*k}")
            for ct in range(4):
                r = HW + 14 * ct + 2 * k
                A(f"ds_read_b64_tr_b16 v[{r}:{r+1}], v{8+ct} offset:{L_W + 2048*k}")
        A("s_waitcnt lgkmcnt(0)")
        for ct in range(4):
            r = HW + 14 * ct + 12
            A(f"v_mfma_f32_16x16x16_bf16 v[{HD+4*ct}:{HD+4*ct+3}], v[{r}:{r+1}], v[{HX+12}:{HX+13}], 0")
        A("s_nop 2")
        for k2 in range(3):
            for ct in range(4):
                r = HW + 14 * ct + 4 * k2
                A(f"v_mfma_f32_16x16x32_bf16 v[{HD+4*ct}:{HD+4*ct+3}], v[{r}:{r+3}], v[{HX+4*k2}:{HX+4*k2+3}], v[{HD+4*ct}:{HD+4*ct+3}]")
        A("s_nop 5")
        for r in range(4): A(f"v_cndmask_b32 v{HD+r}, v{HD+r}, v{HD+4+r}, s[60:61]")
        for r in range(4): A(f"v_cndmask_b32 v{HD+8+r}, v{HD+8+r}, v{HD+12+r}, s[60:61]")
        for r in range(4): A(f"v_cndmask_b32 v{HD+r}, v{HD+r}, v{HD+8+r}, s[62:63]")
        for r in range(4): A(f"v_and_or_b32 v{HD+r}, v{HD+r}, v15, s{50+r}")
        A(f"""s_mov_b32 exec_lo, 0x00ff00ff
              s_mov_b32 exec_hi, 0x00ff00ff
              buffer_store_dwordx4 v[{HD}:{HD+3}], v104, s[40:43], {soff} offen sc1
              s_mov_b64 exec, -1""")
    A(f"""s_lshl_b32 s57, s64, 13
          s_lshl_b32 s58, s31, 11
          s_add_u32 s57, s57, s58
          s_lshl_b32 s58, s30, 8
          s_add_u32 s57, s57, s58
          s_add_u32 s57, s57, {W_Q}
          s_lshr_b32 s58, s2, 4
          s_lshl_b32 s58, s58, 13
          s_add_u32 s58, s58, {W_Q}
          v_add_u32 v105, 0x1000, v5""")
    if dbg: A("s_waitcnt vmcnt(0)")
    stamp(1)
    tile_compute("s31", 65536, "s57")
    stamp(2)
    def check(base, n, lab, mask=None):
        for k in range(n):
            for r in range(4): A(f"v_xor_b32 v{base+4*k+r}, s{50+r}, v{base+4*k+r}")
        regs = [base + i for i in range(4 * n)]
        A(f"v_or3_b32 v1, v{regs[0]}, v{regs[1]}, v{regs[2]}")
        i = 3
        while i < len(regs):
            if i + 1 < len(regs): A(f"v_or3_b32 v1, v1, v{regs[i]}, v{regs[i+1]}"); i += 2
            else: A(f"v_or_b32 v1, v1, v{regs[i]}"); i += 1
        A(f"""v_and_b32 v1, 0xff, v1
              v_cmp_ne_u32 vcc, 0, v1
              s_sub_u32 s59, s59, 1
              s_cbranch_scc1 {lab}ok
              s_cbranch_vccnz {lab}
              {lab}ok:""")
    A(f"s_mov_b32 s59, {0 if nohelp else spin}\nL_qpoll:")
    for rb in range(0 if nohelp else 4):
        for hf in range(2):
            o = rb * 2048 + hf * 1024
            A(f"buffer_load_dwordx4 v[{32+8*rb+4*hf}:{35+8*rb+4*hf}], {'v5' if o < 4096 else 'v105'}, s[40:43], s58 offen offset:{o & 4095} sc1")
    A("s_waitcnt vmcnt(0)")
    check(32, 8, "L_qpoll")
    for r in range(8): A(f"v_add_f32 v{32+r}, v{32+r}, v{40+r}")
    for r in range(8): A(f"v_add_f32 v{48+r}, v{48+r}, v{56+r}")
    for r in range(8): A(f"v_add_f32 v{32+r}, v{32+r}, v{48+r}")
    for r in range(4): A(f"v_cvt_pk_bf16_f32 v{32+r}, v{32+2*r}, v{33+2*r}")
    A(f"""v_lshlrev_b32 v1, 3, v0
          v_mov_b32 v36, 0
          v_mov_b32 v37, 1
          ds_write_b64 v1, v[32:33] offset:{L_Q}
          ds_write_b64 v1, v[34:35] offset:{L_Q+512}
          s_waitcnt lgkmcnt(0)
          ds_write_b32 v36, v37 offset:{L_F}""")
    stamp(3)
    A(f"""s_and_b32 s56, s2, 127
          s_lshl_b32 s56, s56, 7
          s_add_u32 s56, s56, {W_A}
          s_lshr_b32 s57, s2, 2
          s_lshl_b32 s57, s57, 8
          s_add_u32 s57, s57, {W_CNT}
          v_lshlrev_b32 v1, 2, v0""")
    A(f"""s_mov_b32 exec_hi, 0
          buffer_store_dword v36, v1, s[40:43], s56 offen sc1
          buffer_store_dword v36, v1, s[40:43], s57 offen sc1
          s_mov_b64 exec, -1""")
    A(f"""s_and_b32 s44, s2, 15
          s_cmp_ge_u32 s44, {0 if noglu else 14}
          s_cbranch_scc1 L_noglu1
          s_lshr_b32 s45, s2, 4
          s_mul_i32 s45, s45, 14
          s_add_u32 s44, s44, s45
          s_mul_i32 s45, s44, 2341
          s_lshr_b32 s45, s45, 16
          s_mul_i32 s47, s45, 28
          s_sub_u32 s44, s44, s47
          s_and_b32 s47, s45, 3
          s_cmp_ge_u32 s45, 4
          s_cselect_b32 s36, s18, s16
          s_cselect_b32 s37, s19, s17
          s_mov_b32 s38, 1605632
          s_mul_i32 s48, s47, {112*3584}
          s_lshl_b32 s49, s44, 7
          s_add_u32 s48, s48, s49
          v_mul_u32_u24 v4, 3584, v13
          v_add_u32 v4, v4, v12
          s_mul_i32 s57, s45, {2*7168}
          s_lshl_b32 s49, s44, 8
          s_add_u32 s57, s57, s49
          s_add_u32 s57, s57, {W_G}""")
    assert all((i * 2341) >> 16 == i // 28 for i in range(224))
    tile_dma(36, 3584)
    tile_compute("s47", 7168, "s57")
    A("L_noglu1:")
    A(f"""s_lshl_b32 s44, s2, 2
          s_add_u32 s44, s44, {W_R}
          v_mov_b32 v1, s46
          s_mov_b64 exec, 1
          s_waitcnt vmcnt(0)
          buffer_store_dword v1, v5, s[40:43], s44 offen sc1
          s_mov_b64 exec, -1""")
    stamp(4)
    HG = 100
    A(f"""s_mov_b32 s32, s22
          s_mov_b32 s33, s23
          s_mov_b32 s34, 896
          v_and_b32 v1, 31, v0
          v_lshlrev_b32 v1, 5, v1
          buffer_load_dwordx4 v[32:35], v1, s[32:35], 0 offen
          buffer_load_dwordx4 v[36:39], v1, s[32:35], 0 offen offset:16
          v_lshrrev_b32 v4, 5, v0
          v_mul_u32_u24 v4, 896, v4
          v_add_u32 v4, v4, v1
          ds_read_b128 v[40:43], v4 offset:{L_X}
          ds_read_b128 v[44:47], v4 offset:{L_X+16}
          v_mov_b32 v{HG}, 0
          s_mov_b32 exec_lo, 0x0fffffff
          s_mov_b32 exec_hi, 0x0fffffff
          s_waitcnt vmcnt(0) lgkmcnt(0)""")
    for k in range(8):
        A(f"""v_lshlrev_b32 v48, 16, v{32+k}
              v_and_b32 v49, 0xffff0000, v{32+k}
              v_lshlrev_b32 v50, 16, v{40+k}
              v_and_b32 v51, 0xffff0000, v{40+k}
              v_mul_f32 v48, v48, v50
              v_mul_f32 v49, v49, v51
              v_cvt_pk_bf16_f32 v48, v48, v49
              v_lshlrev_b32 v49, 16, v48
              v_and_b32 v48, 0xffff0000, v48
              v_add_f32 v{HG}, v{HG}, v49
              v_add_f32 v{HG}, v{HG}, v48""")
    A("s_mov_b64 exec, -1")
    for d in red + ("row_mirror",):
        A(f"s_nop 1\nv_add_f32_dpp v{HG}, v{HG}, v{HG} {d} {dppf}")
    A(f"""v_mov_b32 v48, v{HG}
          s_nop 1
          v_permlane16_swap_b32 v{HG}, v48
          v_add_f32 v{HG}, v{HG}, v48
          v_cvt_pk_bf16_f32 v{HG}, v{HG}, v{HG}
          v_and_b32 v{HG}, 0xffff0000, v{HG}
          v_mul_f32 v{HG}, 0x{f2u(-LOG2E):08x}, v{HG}
          v_exp_f32 v{HG}, v{HG}
          s_nop 0
          v_add_f32 v{HG}, 1.0, v{HG}
          v_rcp_f32 v{HG}, v{HG}
          s_nop 0
          v_cvt_pk_bf16_f32 v{HG}, v{HG}, v{HG}
          v_and_b32 v{HG}, 0xffff0000, v{HG}
          v_sub_f32 v{HG+1}, 1.0, v{HG}
          v_cvt_pk_bf16_f32 v{HG+1}, v{HG+1}, v{HG+1}
          v_and_b32 v{HG+1}, 0xffff0000, v{HG+1}
          v_lshrrev_b32 v1, 2, v0
          s_mov_b32 exec_lo, 1
          s_mov_b32 exec_hi, 1
          ds_write_b64 v1, v[{HG}:{HG+1}] offset:{L_GT}
          s_mov_b64 exec, -1""")
    stamp(5)
    A(f"""v_and_b32 v1, 3, v0
          v_lshlrev_b32 v1, 1, v1
          v_bfe_u32 v14, v0, 2, 1
          v_add_u32 v1, v1, v14
          v_mul_u32_u24 v4, 7168, v1
          v_min_u32 v1, 6, v13
          v_lshl_add_u32 v4, v1, 4, v4
          s_mul_i32 s44, s65, 112
          s_add_u32 s44, s44, {W_G}
          s_add_u32 s45, s44, {8*7168}
          s_mov_b32 s59, {0 if noglu else spin}
          L_gpoll:
          buffer_load_dwordx4 v[32:35], v4, s[40:43], s44 offen sc1
          buffer_load_dwordx4 v[36:39], v4, s[40:43], s45 offen sc1
          s_waitcnt vmcnt(0)""")
    check(32, 2, "L_gpoll")
    for d in red[:2]:
        for r in range(8): A(f"v_add_f32_dpp v{32+r}, v{32+r}, v{32+r} {d} {dppf}")
    for r in range(4): A(f"v_cvt_pk_bf16_f32 v{36+r}, v{32+r}, v{36+r}")
    for r in range(4): A(f"v_lshlrev_b32 v{32+r}, 16, v{36+r}")
    for r in range(4): A(f"v_and_b32 v{36+r}, 0xffff0000, v{36+r}")
    for r in range(4): A(f"v_mul_f32 v{32+r}, 0x{f2u(-LOG2E):08x}, v{32+r}")
    for r in range(4): A(f"v_exp_f32 v{32+r}, v{32+r}")
    for r in range(4): A(f"v_add_f32 v{32+r}, 1.0, v{32+r}")
    for r in range(4): A(f"v_rcp_f32 v{32+r}, v{32+r}")
    for r in range(4): A(f"v_cvt_pk_bf16_f32 v{32+r}, v{32+r}, v{32+r}")
    for r in range(4): A(f"v_and_b32 v{32+r}, 0xffff0000, v{32+r}")
    for r in range(4): A(f"v_mul_f32 v{32+r}, v{32+r}, v{36+r}")
    for r in range(4): A(f"v_cvt_pk_bf16_f32 v{32+r}, v{32+r}, v{32+r}")
    A(f"""v_mul_u32_u24 v1, 112, v14
          v_lshl_add_u32 v1, v13, 4, v1
          s_mov_b32 exec_lo, 0x11111111
          s_mov_b32 exec_hi, 0x00111111
          ds_write_b128 v1, v[32:35] offset:{L_H}
          s_mov_b64 exec, -1""")
    A(f"""s_mov_b32 s59, {spin}
          s_mov_b32 s44, {W_R}
          L_rpoll:
          buffer_load_dwordx4 v[32:35], v5, s[40:43], s44 offen sc1
          s_sub_u32 s59, s59, 1
          s_cbranch_scc1 L_rok
          s_waitcnt vmcnt(0)
          v_xor_b32 v32, s46, v32
          v_xor_b32 v33, s46, v33
          v_xor_b32 v34, s46, v34
          v_xor_b32 v35, s46, v35
          v_or3_b32 v32, v32, v33, v34
          v_or_b32 v32, v32, v35
          v_cmp_ne_u32 vcc, 0, v32
          s_cbranch_vccnz L_rpoll
          L_rok:
          v_mov_b32 v36, 0
          v_mov_b32 v37, 2
          ds_write_b32 v36, v37 offset:{L_F}
          s_waitcnt vmcnt(0) lgkmcnt(0)""")
    A("L_hlast:")
    stamp(6)
    A("s_barrier")
    stamp(7)
    dump(8)
    A("L_end:")
    A("s_endpgm")
    L.append('.section .rodata,"a"')
    L.append(".p2align 6")
    L.append(f".amdhsa_kernel {KNAME}")
    L.append("""  .amdhsa_next_free_vgpr 256
  .amdhsa_next_free_sgpr 96
  .amdhsa_accum_offset 256
  .amdhsa_group_segment_fixed_size 0
  .amdhsa_kernarg_size 104
  .amdhsa_user_sgpr_count 2
  .amdhsa_user_sgpr_kernarg_segment_ptr 1
  .amdhsa_system_sgpr_workgroup_id_x 1
.end_amdhsa_kernel""")
    return "\n".join(L) + "\n"

if __name__ == "__main__":
    kw = json.loads(sys.argv[1]) if len(sys.argv) > 1 else {}
    sys.stdout.write(gen(**kw))
```

```python
import sys, json, struct
KNAME = "gated_mix__gqa_block_cached__glu_gated_glu__decode_kernel"

HEADER = """; Kernarg layout for this problem (104 bytes, ptrs only, base s[0:1]):
;   offset   0: d_in[0] A_x  shape=(2, 1, 448) dtype=bfloat16
;   offset   8: d_in[1] A_k_cache  shape=(2, 8, 16384, 256) dtype=bfloat16
;   offset  16: d_in[2] A_v_cache  shape=(2, 8, 16384, 256) dtype=bfloat16
;   offset  24: d_in[3] A_wq  shape=(448, 4096) dtype=bfloat16
;   offset  32: d_in[4] A_wo  shape=(4096, 448) dtype=bfloat16
"""

W_EPOCH = 0
W_CNT   = 0x1000
W_Q     = 0x8000
W_G     = 0x30000
W_A     = 0x50000
W_R     = 0x60000
W_T     = 0x61000
W_O     = 0x80000
W_S     = 0x100000
W_DBG   = 0x400000
W_SIZE  = 0x800000

L_X   = 0
L_W   = 2048
L_Q   = 16384
L_F   = 17408
L_GT  = 17536
L_LS  = 17600
L_H   = 17664
L_P   = 18432
L_R   = 26624
L_S   = 30720
L_W2  = 34816
LDS_SIZE = 49152

NH, NS = 10, 12
LOG2E = 1.4426950408889634
def f2u(x): return struct.unpack("<I", struct.pack("<f", x))[0]
dppf = "row_mask:0xf bank_mask:0xf"
red = ("quad_perm:[1,0,3,2]", "quad_perm:[2,3,0,1]", "row_half_mirror")

def gen(order="q w0 w1 h p t0 t1 t2 x0 x1 x2 t3", dbg=0, spin=200000, noglu=0, prio=0, wpos=2, osc="sc1", touch=1, atom_late=0, idle=0, pbar=1, mixp=2, PT=3, hexit=0, nowq=0, nocomp=0, kasv=0, now=0, nosc=0, clate=0, bar0=1, samebuf=0, pad=0, tlate=4, gearly=1, noexp=0, nogp=0, efl='sc1', gran=2, win=6, kvfl='nt', cu=1, vsplit=1, amid=1):
    NB = 4
    pos = {n: 11 + i for i, n in enumerate(order.split())}
    dorder = [n for n in order.split() if n not in ('q', 'h', 't3')]
    assert dorder[3:6] == ['t0', 't1', 't2'] and PT <= 8
    L = []
    def A(s):
        for line in s.split("\n"):
            line = line.strip()
            if line: L.append(("" if line.endswith(":") else "    ") + line)
    U = PT * 16
    D = PT * 4
    SV = 16 - PT
    def stamp(k, force=False):
        if dbg == 3 and not force and instream[0] and k in (1, 3, 5, 10, 8, 11): return
        if dbg: A(f"s_memrealtime s[{72+2*k}:{73+2*k}]")
    instream = [False]
    def pstamp(reg, val, k):
        if dbg == 3:
            A(f"s_cmp_eq_u32 {reg}, {val}\ns_cbranch_scc0 L_pg{k}"); stamp(k, True); A(f"L_pg{k}:")
    def dump(n):
        if not dbg: return
        A("s_waitcnt lgkmcnt(0)")
        A("s_mul_i32 s60, s2, 5\ns_add_u32 s60, s60, s3\ns_lshl_b32 s60, s60, 6")
        A(f"s_add_u32 s60, s60, {W_DBG}")
        A("s_mov_b64 exec, 1")
        A("v_mov_b32 v1, 0")
        for k in range(n):
            A(f"v_mov_b32 v2, s{72+2*k}")
            A(f"buffer_store_dword v2, v1, s[40:43], s60 offen offset:{4*k}")
        A("s_getreg_b32 s61, hwreg(HW_REG_XCC_ID)")
        A("v_mov_b32 v2, s61")
        A("buffer_store_dword v2, v1, s[40:43], s60 offen offset:60")
        A("v_mov_b32 v2, s46")
        A("buffer_store_dword v2, v1, s[40:43], s60 offen offset:56")
    def dep(dst, base, src, names, P, tmp="s48"):
        i = 0
        while i < len(names):
            if names[i] is None: i += 1; continue
            j = i
            while j + 1 < len(names) and names[j + 1] is not None and P[names[j + 1]] == P[names[j]] + 1: j += 1
            A(f"s_bfe_u32 {tmp}, {src}, 0x{((j - i + 1) << 16) | i:x}")
            A(f"s_lshl_b32 {tmp}, {tmp}, {P[names[i]]}")
            A(f"s_add_u32 {dst}, {base}, {tmp}")
            base = dst; i = j + 1
    TN = ["t0", "t1", "t2", "t3"]
    def tconst(t): return sum(((t >> i) & 1) << pos[TN[i]] for i in range(4))
    def lg(n): return 0 if dbg else n
    def ldswait(lab, off, val, vz, vt, sleep=0):
        A(f"s_mov_b32 s59, {spin*8}\n{lab}:")
        if sleep: A(f"s_sleep {sleep}")
        A(f"""ds_read_b32 v{vt}, v{vz} offset:{off}
              s_sub_u32 s59, s59, 1
              s_cbranch_scc1 {lab}x
              s_waitcnt lgkmcnt(0)
              v_cmp_gt_u32 vcc, {val}, v{vt}
              s_cbranch_vccnz {lab}
              {lab}x:""")

    L.append(HEADER.rstrip())
    L.append(f"; @launch grid=(256,1,1) block=(320,1,1) lds={LDS_SIZE}")
    L.append('.amdgcn_target "amdgcn-amd-amdhsa--gfx950"')
    L.append(".text")
    L.append(f".globl {KNAME}")
    L.append(".p2align 12")
    L.append(f".fill {(4096-768)//4}, 4, 0xbf810000")
    L.append(".p2align 8")
    L.append(f".type {KNAME},@function")
    L.append(f"{KNAME}:")
    A("s_cmp_ge_u32 s2, 256")
    A("s_cbranch_scc1 L_end")
    stamp(0)
    if dbg:
        for k in range(1, 12): A(f"s_mov_b32 s{72+2*k}, 0")
    A("""s_load_dwordx16 s[4:19], s[0:1], 0
         s_load_dwordx8 s[20:27], s[0:1], 64
         s_load_dwordx2 s[28:29], s[0:1], 96
         v_lshrrev_b32 v1, 6, v0
         v_and_b32 v0, 63, v0
         v_readfirstlane_b32 s3, v1
         v_lshrrev_b32 v2, 4, v0
         v_and_b32 v3, 15, v0
         s_mov_b32 s35, 0x20000
         s_mov_b32 s39, 0x20000
         s_mov_b32 s43, 0x20000""")
    A(f"s_mov_b32 s42, {W_SIZE}")
    A("""s_and_b32 s30, s2, 7
         s_lshr_b32 s31, s2, 7
         s_lshl_b32 s66, s31, 4
         s_lshl_b32 s31, s31, 1
         s_bfe_u32 s64, s2, 0x10003
         s_add_u32 s31, s31, s64
         s_and_b32 s64, s2, 15
         s_add_u32 s66, s66, s64
         s_bfe_u32 s64, s2, 0x30004
         s_lshl_b32 s65, s64, 3
         s_add_u32 s65, s65, s30""")
    A("s_cmp_eq_u32 s3, 0")
    A("s_cbranch_scc0 L_stream")
    if prio: A(f"s_setprio {prio}")
    A(f"""v_mov_b32 v1, 0
          v_lshlrev_b32 v4, 2, v3
          v_lshrrev_b32 v13, 3, v0
          ds_write_b32 v4, v1 offset:{L_F}
          v_and_b32 v12, 6, v13
          v_xor_b32 v12, v12, v0
          v_and_b32 v12, 7, v12
          v_lshlrev_b32 v12, 4, v12
          v_lshl_add_u32 v4, v13, 13, v12
          v_mul_u32_u24 v106, 3584, v13
          v_add_u32 v106, v106, v12
          v_lshlrev_b32 v5, 4, v0
          v_and_b32 v107, 31, v0
          v_lshlrev_b32 v107, 5, v107
          s_mul_i32 s48, s31, {112*8192}
          s_lshl_b32 s44, s65, 7
          s_add_u32 s48, s48, s44
          s_and_b32 s67, s2, 15
          s_lshr_b32 s45, s2, 4
          s_mul_i32 s45, s45, 14
          s_add_u32 s55, s67, s45
          s_mul_i32 s54, s55, 2341
          s_lshr_b32 s54, s54, 16
          s_mul_i32 s45, s54, 28
          s_sub_u32 s55, s55, s45
          s_and_b32 s56, s54, 3
          s_mul_i32 s49, s56, {112*3584}
          s_lshl_b32 s45, s55, 7
          s_add_u32 s49, s49, s45
          s_mov_b32 s34, 1792
          s_mov_b32 s38, 3670016
          s_mov_b32 s70, 896
          s_mov_b32 s71, 0x20000
          s_mov_b32 m0, {L_X}
          s_waitcnt lgkmcnt(0)
          s_mov_b32 s36, s10
          s_mov_b32 s37, s11
          s_mov_b32 s32, s4
          s_mov_b32 s33, s5
          s_mov_b32 s68, s22
          s_mov_b32 s69, s23""")
    assert all((i * 2341) >> 16 == i // 28 for i in range(224))
    def tile_dma(lab, lbase, vreg, sreg, rowb):
        A(f"""s_mov_b32 m0, {lbase}
              s_nop 0
              {lab}:
              buffer_load_dwordx4 {vreg}, s[36:39], {sreg} offen nt lds
              s_add_u32 m0, m0, 1024
              s_add_u32 {sreg}, {sreg}, {8*rowb}
              s_cmp_lt_u32 m0, {lbase + 14*1024}
              s_cbranch_scc1 {lab}""")
    def glu_dma():
        A(f"""s_cmp_ge_u32 s54, 4
              s_cselect_b32 s36, s18, s16
              s_cselect_b32 s37, s19, s17
              s_mov_b32 s38, 1605632""")
        tile_dma("L_gdma", L_W2, "v106", "s49", 3584)
    A("buffer_load_dwordx4 v5, s[32:35], 0 offen lds")
    A("buffer_load_dwordx4 v5, s[32:35], 0 offen offset:1024 lds")
    if not nowq: tile_dma("L_qdma", L_W, "v4", "s48", 8192)
    A("""buffer_load_dwordx4 v[108:111], v107, s[68:71], 0 offen
         buffer_load_dwordx4 v[112:115], v107, s[68:71], 0 offen offset:16""")
    if gearly:
        A(f"""s_cmp_ge_u32 s67, {0 if noglu else 14}
              s_cbranch_scc1 L_nogdma""")
        glu_dma()
        A("L_nogdma:")
    A("""s_barrier
         s_load_dword s46, s[28:29], 0
         s_mov_b32 s40, s28
         s_mov_b32 s41, s29
         s_branch L_helper""")

    VO = 208
    VZ = 6
    VSA = 7
    VQ = 8
    VMASK = 16
    VACC = 20
    VM, VMC = 28, 29
    VGS = 30
    VS = 32
    VA = 32
    VT = 48
    VSC = 60
    VB = 64
    VW = VB + 64
    VX = 192
    def buf(n): return VB + 32 * n
    A("L_stream:")
    instream[0] = True
    A(f"""v_lshrrev_b32 v{VO}, 2, v3
          v_lshlrev_b32 v{VO}, 9, v{VO}
          v_lshl_add_u32 v{VO}, v2, 6, v{VO}
          v_and_b32 v6, 3, v3
          v_lshl_add_u32 v{VO}, v6, 4, v{VO}
          s_sub_u32 s44, s3, 1
          s_lshr_b32 s47, s2, 4
          s_lshl_b32 s47, s47, 23
          s_mov_b32 s34, 0x8000000""")
    if kasv: A(f"v_lshlrev_b32 v{VO}, 9, v2\nv_lshl_add_u32 v{VO}, v3, 4, v{VO}")
    def quads():
        A(f"""v_add_u32 v{VO+1}, {1 << pos['q']}, v{VO}
              v_add_u32 v{VO+2}, {1 << pos['h']}, v{VO}
              v_add_u32 v{VO+3}, {(1 << pos['h']) + (1 << pos['q'])}, v{VO}""")
    quads()
    dep("s45", "s47", "s2", ["x0", "x1", "x2", "p"], pos)
    dep("s45", "s45", "s44", ["w0", "w1"], pos)
    if touch:
        A("""s_cmp_eq_u32 s3, 1
             s_cbranch_scc1 L_tch1
             s_cmp_eq_u32 s3, 2
             s_cbranch_scc1 L_tch2
             s_cmp_eq_u32 s3, 3
             s_cbranch_scc1 L_tch3
             s_branch L_tch4
             L_tback:""")
    A("""s_waitcnt lgkmcnt(0)
         s_mov_b32 s32, s6
         s_mov_b32 s33, s7""")
    if bar0: A("s_barrier")
    WG = win - gran
    def issueH(n, hh, extra=0):
        b = buf(0 if samebuf else n)
        if pad: A(f"s_nop {pad-1}")
        for m in range(4 * hh, 4 * hh + 4):
            if m & 3 and m % gran == 0 and extra < 8: A(f"s_waitcnt vmcnt({WG + (extra if m <= WG else 0)})")
            A(f"buffer_load_dwordx4 v[{b+4*m}:{b+4*m+3}], v{VO + (m >> 1)}, s[32:35], s45 offen offset:{256*(m & 1)} {kvfl}")
    issueH(0, 0, 8); issueH(0, 1, 8)
    A("s_mov_b32 s38, s45")
    if not bar0: A("s_barrier")
    cstart = len(L)
    A(f"""s_load_dword s67, s[28:29], 0
          s_mov_b32 s36, s8
          s_mov_b32 s37, s9
          s_mov_b32 s40, s28
          s_mov_b32 s41, s29
          s_lshr_b32 s58, s2, 4
          s_lshl_b32 s48, s58, 2
          s_lshl_b32 s58, s58, 15
          s_add_u32 s58, s58, {W_S}
          s_lshr_b32 s27, s2, {1 if mixp == 2 else 0}
          s_add_u32 s27, s44, {"s27" if mixp else "0"}
          s_and_b32 s27, s27, 3
          s_add_u32 s48, s48, s27
          s_lshl_b32 s27, s27, 7
          s_lshl_b32 s48, s48, 8
          s_add_u32 s48, s48, {W_CNT}
          s_add_u32 s50, s28, s48
          s_addc_u32 s51, s29, 0
          s_mov_b32 s46, 0
          s_mov_b32 s49, {NB}
          s_mov_b32 s52, 0x{f2u(LOG2E/16):08x}
          s_mov_b32 s53, 0
          s_mov_b32 s4, s12
          s_mov_b32 s5, s13
          s_mov_b32 s6, 3670016
          s_mov_b32 s7, 0x20000
          s_mov_b32 s8, s20
          s_mov_b32 s9, s21
          s_mov_b32 s10, 1605632
          s_mov_b32 s11, 0x20000
          s_lshl_b32 s12, s65, 6
          s_and_b32 s48, s44, 1
          s_lshl_b32 s48, s48, 5
          s_add_u32 s12, s12, s48
          s_lshr_b32 s48, s44, 1
          s_lshl_b32 s48, s48, 2
          s_add_u32 s12, s12, s48
          s_mul_i32 s12, s12, 896
          s_lshl_b32 s48, s31, 8
          s_add_u32 s12, s12, s48
          s_mul_i32 s13, s65, {28*896}
          s_add_u32 s13, s13, s48
          s_mul_i32 s48, s44, {8*896}
          s_add_u32 s13, s13, s48
          s_cmp_eq_u32 s31, 3
          s_cselect_b32 s14, 0x00ff00ff, -1
          s_cselect_b32 s39, 2, 4
          s_mov_b32 s15, s14""")
    X = lambda k: VX + k
    A(f"""v_mul_u32_u24 v{X(0)}, {8*896}, v2
          v_lshl_add_u32 v{X(0)}, v3, 4, v{X(0)}
          v_mul_u32_u24 v{X(1)}, 896, v2
          v_lshl_add_u32 v{X(1)}, v3, 4, v{X(1)}
          v_and_b32 v6, 1, v3
          v_cmp_eq_u32 vcc, 1, v6
          v_mov_b32 v7, 0xffff
          v_mov_b32 v{VT}, 0xffff0000
          v_cndmask_b32 v7, v7, v{VT}, vcc
          v_bfe_u32 v6, v3, 1, 2""")
    for r in range(4):
        A(f"""v_cmp_eq_u32 vcc, {r}, v6
              s_nop 1
              v_cndmask_b32 v{VMASK+r}, 0, v7, vcc""")
    for r in range(8): A(f"v_mov_b32 v{VACC+r}, 0")
    A(f"""v_mov_b32 v{VM}, 0xff7fffff
          v_mov_b32 v{VZ}, 0
          v_lshrrev_b32 v1, 3, v3
          v_lshlrev_b32 v{X(2)}, 9, v1
          v_lshl_add_u32 v{X(2)}, v2, 6, v{X(2)}
          v_and_b32 v{VT}, 3, v3
          v_lshl_add_u32 v{X(2)}, v{VT}, 4, v{X(2)}
          v_lshlrev_b32 v{X(3)}, 4, v0
          v_and_b32 v{VGS}, 0x38, v0
          s_lshl_b32 s48, s44, 6
          v_add_u32 v{VSA}, s48, v{VGS}""")
    A(f"""v_lshrrev_b32 v{X(4)}, 1, v2
          v_lshl_add_u32 v{X(4)}, v{X(4)}, 2, v1
          v_lshlrev_b32 v{X(4)}, 13, v{X(4)}
          v_and_b32 v{VT}, 1, v2
          v_lshl_add_u32 v{X(4)}, v{VT}, 7, v{X(4)}
          v_and_b32 v{VT+1}, 7, v3
          v_lshl_add_u32 v{X(4)}, v{VT+1}, 4, v{X(4)}
          s_lshl_b32 s16, s64, 16
          s_lshl_b32 s48, s66, 8
          s_add_u32 s16, s16, s48
          s_add_u32 s16, s16, {W_O}
          s_add_u32 s26, s16, 0x4000
          v_and_b32 v{X(5)}, 8, v3
          v_add_u32 v{X(5)}, v{X(5)}, v3
          v_lshlrev_b32 v{X(5)}, 8, v{X(5)}
          s_lshl_b32 s48, s44, 6
          v_lshl_add_u32 v{X(5)}, v2, 4, v{X(5)}
          v_add_u32 v{X(5)}, s48, v{X(5)}
          s_lshl_b32 s17, s65, 13
          s_add_u32 s17, s17, {W_O}""")
    A(f"""v_mul_u32_u24 v{X(6)}, 28, v1
          v_add_u32 v{X(6)}, v{X(6)}, v2
          s_lshl_b32 s48, s44, 5
          v_lshl_add_u32 v{X(6)}, v{X(6)}, 2, s48
          v_lshrrev_b32 v{X(7)}, 1, v2
          v_lshlrev_b32 v{X(8)}, 9, v{X(7)}
          v_lshlrev_b32 v{X(7)}, 3, v{X(7)}
          v_lshl_add_u32 v{X(8)}, v3, 5, v{X(8)}
          v_lshl_add_u32 v{X(8)}, v{VT}, 4, v{X(8)}
          s_lshl_b32 s48, s44, 10
          v_add_u32 v{X(8)}, s48, v{X(8)}
          v_lshl_add_u32 v{X(11)}, v2, 3, v{VT+1}
          s_lshl_b32 s48, s44, 7
          v_lshl_add_u32 v{X(9)}, v{X(11)}, 2, s48
          v_lshlrev_b32 v{X(11)}, 1, v{X(11)}
          v_lshlrev_b32 v{X(10)}, 7, v2
          v_lshl_add_u32 v{X(10)}, v3, 2, v{X(10)}
          v_lshlrev_b32 v{X(12)}, 2, v1
          v_mov_b32 v{X(13)}, 0xffffff00
          v_mov_b32 v{X(14)}, 1
          v_cmp_eq_u32 s[60:61], 8, v3
          s_lshl_b32 s18, s31, 12
          s_lshl_b32 s48, s44, 9
          s_add_u32 s18, s18, s48
          s_add_u32 s18, s18, {W_A}
          s_lshl_b32 s19, s31, 8
          s_lshl_b32 s48, s44, 6
          s_add_u32 s19, s19, s48
          s_mov_b32 s20, s24
          s_mov_b32 s21, s25
          s_mov_b32 s22, 1792
          s_mov_b32 s23, 0x20000""")
    consts = L[cstart:]
    cuts = [0]
    for k in range(1, 6):
        c = k * len(consts) // 6
        while "s_cselect" in consts[c] or "s_addc" in consts[c]: c += 1
        cuts.append(c)
    cuts.append(len(consts))
    if clate: del L[cstart:]
    if touch and not clate: A("s_branch L_pro1\nL_tch3:\ns_branch L_tback\nL_pro1:")
    for n in range(1, NB):
        A(f"s_add_u32 s45, s38, {tconst(n)}")
        A(f"s_waitcnt vmcnt({WG})")
        if n == 1: stamp(1)
        issueH(n, 0)
        if clate == 2: L.extend(consts[cuts[2*n-2]:cuts[2*n-1]])
        A(f"s_waitcnt vmcnt({WG})")
        issueH(n, 1)
        if clate == 2: L.extend(consts[cuts[2*n-1]:cuts[2*n]])
        if clate and touch and n == 2: A("s_branch L_pro1\nL_tch3:\ns_branch L_tback\nL_pro1:")
    if clate == 1: L.extend(consts)
    stamp(2)
    ldswait("L_qw", L_F, 1, VZ, VT)
    A(f"ds_read_b128 v[{VQ}:{VQ+3}], v{X(2)} offset:{L_Q}")
    A(f"ds_read_b128 v[{VQ+4}:{VQ+7}], v{X(2)} offset:{L_Q+256}")
    stamp(3)
    A("""s_add_u32 s67, s67, 0x01010101
         s_and_b32 s68, s67, 0xff
         s_bfe_u32 s69, s67, 0x80008
         s_bfe_u32 s70, s67, 0x80010
         s_lshr_b32 s71, s67, 24
         s_waitcnt lgkmcnt(0)""")
    def qk(n):
        if nocomp: return
        b = buf(n)
        for kk in range(4):
            A(f"v_mfma_f32_16x16x32_bf16 v[{VS+4*kk}:{VS+4*kk+3}], v[{b+8*kk}:{b+8*kk+3}], v[{VQ}:{VQ+3}], 0")
        for kk in range(4):
            A(f"v_mfma_f32_16x16x32_bf16 v[{VS+4*kk}:{VS+4*kk+3}], v[{b+8*kk+4}:{b+8*kk+7}], v[{VQ+4}:{VQ+7}], v[{VS+4*kk}:{VS+4*kk+3}]")
        A("s_nop 4")
        for kk in range(4): A(f"v_mov_b32_dpp v{VT+kk}, v{VS+4*kk} quad_perm:[0,0,0,0] {dppf}")
        for c in range(1, 4):
            for kk in range(4): A(f"v_add_f32_dpp v{VT+kk}, v{VS+4*kk+c}, v{VT+kk} quad_perm:[{c},{c},{c},{c}] {dppf}")
        A(f"""v_cvt_pk_bf16_f32 v{VT+4}, v{VT}, v{VT+1}
              v_cvt_pk_bf16_f32 v{VT+5}, v{VT+2}, v{VT+3}
              v_max3_f32 v{VM}, v{VM}, v{VT}, v{VT+1}
              ds_write_b64 v{VSA}, v[{VT+4}:{VT+5}] offset:{L_S + 256*n}
              v_max3_f32 v{VM}, v{VM}, v{VT+2}, v{VT+3}""")
    for n in range(NB):
        A(f"L_k{n}:")
        if n < NB - 1 or cu:
            A(f"""s_cmp_eq_u32 s46, 0
                  s_cbranch_scc1 {f"L_kc{n}" if (cu and n) else f"L_ka{n}"}""")
        if n == NB - 1:
            A("""s_cmp_eq_u32 s46, 12
                 s_cbranch_scc1 L_ktov""")
        if n == NB - 1: A("L_kgo:")
        dep("s45", "s38", "s49", TN, pos)
        A("s_add_u32 s49, s49, 1")
        A(f"s_waitcnt vmcnt({WG})")
        issueH((n + 1) % NB, 0)
        if cu and n == NB - 1: A("L_kc3:")
        A(f"s_waitcnt vmcnt({WG})")
        issueH((n + 1) % NB, 1)
        if n == 2: pstamp("s46", 4, 1); pstamp("s46", 8, 3); pstamp("s46", 12, 5)
        if n == 3: pstamp("s46", 12, 10)
        A(f"L_ka{n}:")
        qk(n)
        if n == (PT - 1) % NB:
            A(f"""s_cmp_eq_u32 s46, {(PT-1)//NB*NB}
                  s_cbranch_scc0 L_nopool
                  s_mov_b64 exec, 1
                  ds_add_u32 v{VZ}, v{X(14)} offset:{L_F+4}
                  s_mov_b64 exec, -1
                  L_nopool:""")
        if touch and n == 1: A("s_branch L_k2\nL_tch4:\ns_branch L_tback")
    A(f"""v_add_u32 v{VSA}, {256*NB}, v{VSA}
          s_add_u32 s46, s46, {NB}
          s_cmp_lt_u32 s46, 16
          s_cbranch_scc1 L_k0""")
    A(f"""s_mov_b64 exec, 1
          ds_add_u32 v{VZ}, v{X(14)} offset:{L_F+8}
          s_mov_b64 exec, -1
          v_subrev_u32 v{VSA}, {256*SV}, v{VSA}
          v_mov_b32 v{VT}, v{VM}
          ds_read_b64 v[{VSC}:{VSC+1}], v{VSA} offset:{L_S}
          s_mov_b32 s46, 1
          v_permlane16_swap_b32 v{VM}, v{VT}
          v_max_f32 v{VM}, v{VM}, v{VT}
          v_mov_b32 v{VT}, v{VM}
          s_nop 1
          v_permlane32_swap_b32 v{VM}, v{VT}
          v_max_f32 v{VM}, v{VM}, v{VT}
          v_cvt_pk_bf16_f32 v{VM}, v{VM}, v{VM}
          v_and_b32 v{VM}, 0xffff0000, v{VM}
          v_mul_f32 v{VMC}, s52, v{VM}""")
    stamp(10)
    def rescale():
        A(f"""v_mov_b32 v{VT+6}, v{VT+5}
              s_nop 1
              v_mov_b32_dpp v{VT+6}, v{VT+5} row_ror:8 row_mask:0x3 bank_mask:0xc
              s_nop 1
              v_mov_b32_dpp v{VT+6}, v{VT+5} row_ror:8 row_mask:0xc bank_mask:0x3""")
        for r in range(8): A(f"v_mul_f32 v{VACC+r}, v{VACC+r}, v{VT+6}")
    def unpack(sc):
        A(f"""v_lshlrev_b32 v{VT}, 16, v{sc}
              v_and_b32 v{VT+1}, 0xffff0000, v{sc}
              v_lshlrev_b32 v{VT+2}, 16, v{sc+1}
              v_and_b32 v{VT+3}, 0xffff0000, v{sc+1}""")
    def probs():
        for kk in range(4): A(f"v_fma_f32 v{VT+kk}, v{VT+kk}, s52, -v{VMC}")
        for kk in range(4): A(f"v_exp_f32 v{VT+kk}, v{VT+kk}")
        for kk in range(4): A(f"v_cvt_pk_bf16_f32 v{VT+kk}, v{VT+kk}, v{VT+kk}")
        for kk in range(4):
            for r in range(4): A(f"v_and_b32 v{VA+4*kk+r}, v{VT+kk}, v{VMASK+r}")
    def pv(n, ks=range(4)):
        b = buf(n)
        for kk in ks:
            for hf in range(2):
                A(f"v_mfma_f32_16x16x32_bf16 v[{VACC+4*hf}:{VACC+4*hf+3}], v[{VA+4*kk}:{VA+4*kk+3}], v[{b+8*kk+4*hf}:{b+8*kk+4*hf+3}], v[{VACC+4*hf}:{VACC+4*hf+3}]")
    def treq(n):
        A(f"""s_cmp_lt_u32 s46, {SV}
              s_cbranch_scc1 L_noat{n}""")
        if n == SV % 2:
            A(f"""s_cmp_eq_u32 s46, {SV}
                  s_cbranch_scc1 L_f2wait
                  L_f2go:""")
        A(f"""s_mov_b32 s53, 1
              s_atomic_add s53, s[50:51], 0 glc
              L_noat{n}:""")
    A("s_branch L_v0")
    if cu:
        assert gran == 2
        for n in (1, 2):
            A(f"L_kc{n}:")
            if n == 1: A(f"s_add_u32 s45, s38, {tconst(4)}\ns_mov_b32 s49, 5")
            A(f"s_waitcnt vmcnt({WG})")
            for m in range(2 * n - 2, 2 * n):
                A(f"buffer_load_dwordx4 v[{buf(0)+4*m}:{buf(0)+4*m+3}], v{VO + (m >> 1)}, s[32:35], s45 offen offset:{256*(m & 1)} {kvfl}")
            A(f"s_branch L_ka{n}")
    A(f"""L_ktov:
          s_mov_b32 s32, s36
          s_mov_b32 s33, s37
          s_mov_b32 s49, {PT}
          v_lshlrev_b32 v{VO}, 9, v2
          v_lshl_add_u32 v{VO}, v3, 4, v{VO}""")
    quads()
    A("s_branch L_kgo")
    L.append(f".fill ((({KNAME} - .) & 4095) >> 2), 4, 0xbf810000")
    A("L_tch5:\ns_branch L_tch9")
    for n in range(2):
        sc, scn = VSC + 2 * n, VSC + 2 * (1 - n)
        A(f"""L_v{n}:
              s_waitcnt lgkmcnt(0)
              s_cmp_lt_u32 s46, {SV}
              s_cbranch_scc0 L_vd{n}
              v_add_u32 v{VSA}, 256, v{VSA}""")
        dep("s45", "s38", "s49", TN, pos)
        A(f"""s_add_u32 s49, s49, 1
              ds_read_b64 v[{scn}:{scn+1}], v{VSA} offset:{L_S}
              s_waitcnt vmcnt({WG})""")
        issueH(1 - n, 0)
        def prep():
            unpack(sc)
            A(f"""v_max3_f32 v{VT+4}, v{VT}, v{VT+1}, v{VT+2}
                  v_max_f32 v{VT+4}, v{VT+4}, v{VT+3}
                  v_cmp_gt_f32 vcc, v{VT+4}, v{VM}
                  s_cbranch_vccnz L_max{n}
                  L_nomax{n}:""")
            if not nocomp: probs()
        if vsplit:
            A(f"L_vb{n}:")
            if amid: A("s_add_u32 s46, s46, 1"); treq(n)
            prep()
            A(f"""s_waitcnt vmcnt({WG + (1 if WG >= 4 else 0)})
                  s_cmp_lt_u32 s46, {SV + amid}
                  s_cbranch_scc0 L_vc{n}
                  s_waitcnt vmcnt({WG})
                  L_vc{n}:""")
        else:
            A(f"s_waitcnt vmcnt({WG})\nL_vb{n}:")
        issueH(1 - n, 1)
        if not (vsplit and amid): A("s_add_u32 s46, s46, 1")
        if n == 1: pstamp("s46", 5, 8); pstamp("s46", 9, 11)
        if tlate and n == (SV - tlate) % 2:
            A(f"""s_cmp_eq_u32 s46, {SV - tlate}
                  s_cbranch_scc0 L_nosig
                  ds_write_b32 v{VZ}, v{X(14)} offset:{L_F+20}
                  L_nosig:""")
        if not atom_late and not (vsplit and amid): treq(n)
        if not vsplit: prep()
        if not nocomp: pv(n)
        if atom_late: treq(n)
        if n == 1: A("s_branch L_v0")
    A("L_tch9:\ns_branch L_tch6")
    A("L_f2wait:")
    ldswait("L_f2w", L_F, 2, VZ, VT + 7)
    A("s_branch L_f2go")
    for n in range(2):
        scn = VSC + 2 * (1 - n)
        A(f"""L_vd{n}:
              s_cmp_ge_u32 s53, {U}
              s_cbranch_scc1 L_dry{n}
              s_cmp_ge_u32 s53, {8*PT}
              s_cselect_b32 s55, {8*(8-PT)}, 0
              s_add_u32 s53, s53, s27
              s_add_u32 s53, s53, s55
              s_lshl_b32 s55, s53, 6
              s_add_u32 s55, s55, s58""")
        dep("s45", "s47", "s53", dorder, pos)
        A(f"s_waitcnt vmcnt({WG})")
        if not nosc: A(f"buffer_load_dwordx2 v[{scn}:{scn+1}], v{VGS}, s[40:43], s55 offen sc1")
        issueH(1 - n, 0, 0 if nosc else 1)
        if not vsplit: A(f"s_waitcnt vmcnt({WG + (1 if (WG >= 4 and not nosc) else 0)})")
        A(f"s_branch L_vb{n}")
        A(f"""L_max{n}:
              v_max_f32 v{VT+4}, v{VT+4}, v{VM}
              v_mov_b32 v{VT+5}, v{VT+4}
              s_nop 1
              v_permlane16_swap_b32 v{VT+4}, v{VT+5}
              v_max_f32 v{VT+4}, v{VT+4}, v{VT+5}
              v_mov_b32 v{VT+5}, v{VT+4}
              s_nop 1
              v_permlane32_swap_b32 v{VT+4}, v{VT+5}
              v_max_f32 v{VM}, v{VT+4}, v{VT+5}
              v_mul_f32 v{VT+4}, s52, v{VM}
              v_sub_f32 v{VT+5}, v{VMC}, v{VT+4}
              v_exp_f32 v{VT+5}, v{VT+5}
              v_mov_b32 v{VMC}, v{VT+4}""")
        rescale()
        A(f"s_branch L_nomax{n}")
    def issueW():
        A("s_mov_b64 exec, s[14:15]")
        for t in range(4):
            A(f"buffer_load_dwordx4 v[{VW+4*t}:{VW+4*t+3}], v{X(0)}, s[4:7], s12 offen offset:{896*t} nt")
        for t in range(2):
            A(f"buffer_load_dwordx4 v[{VW+16+4*t}:{VW+16+4*t+3}], v{X(1)}, s[8:11], s13 offen offset:{3584*t} nt")
        A("s_mov_b64 exec, -1")
    A(f"""L_dry1:
          s_waitcnt vmcnt(4)
          v_mov_b32 v{VSC}, v{VSC+2}
          v_mov_b32 v{VSC+1}, v{VSC+3}
          s_mov_b32 s49, 1
          s_branch L_dry
          L_tch6:
          s_branch L_tch7
          L_dry0:
          s_waitcnt vmcnt(4)
          s_mov_b32 s49, 0
          L_dry:""")
    if now: wpos = 3
    if wpos == 0: issueW()
    ldswait("L_f3w", L_F, 3, VZ, VT + 7)
    HR = buf(3)
    A(f"""ds_read_b32 v{VT+4}, v{X(12)} offset:{L_LS}
          ds_read_b32 v{HR}, v{X(6)} offset:{L_H}
          ds_read_b32 v{HR+1}, v{X(6)} offset:{L_H+16}
          ds_read_b64 v[{HR+2}:{HR+3}], v{X(7)} offset:{L_GT}""")
    unpack(VSC)
    A(f"""s_waitcnt lgkmcnt(0)
          v_sub_f32 v{VT+5}, v{VMC}, v{VT+4}
          v_exp_f32 v{VT+5}, v{VT+5}
          v_mov_b32 v{VMC}, v{VT+4}""")
    rescale()
    probs()
    for t in range(2):
        for r in range(4): A(f"v_and_b32 v{HR+4+4*t+r}, v{HR+t}, v{VMASK+r}")
    nW = 6 if wpos == 0 else 0
    PR = VQ
    A(f"""s_mov_b32 s59, {spin}
          s_cmp_eq_u32 s49, 0
          s_cbranch_scc0 L_pv1""")
    for n in range(2):
        if n: A("L_pv1:")
        pv(n, (0, 1))
        A(f"s_mov_b64 exec, 1\ns_waitcnt vmcnt({nW})")
        stamp(4)
        if idle:
            A(f"""s_and_b32 s96, s72, 0xffffff80
                  s_add_u32 s96, s96, {idle}
                  L_idle{n}:
                  s_memrealtime s[98:99]
                  s_waitcnt lgkmcnt(0)
                  s_sub_u32 s97, s98, s96
                  s_cmp_lt_i32 s97, 0
                  s_cbranch_scc1 L_idle{n}""")
        A(f"""ds_add_rtn_u32 v{VT}, v{VZ}, v{X(14)} offset:{L_F+12}
              s_mov_b64 exec, -1""")
        pv(n, (2, 3))
        if n == 0: A("s_branch L_tail")
    A("L_tail:")
    if wpos == 2: issueW()
    A(f"""s_waitcnt lgkmcnt(0)
          v_readfirstlane_b32 s54, v{VT}
          s_cmp_eq_u32 s54, 3
          s_cbranch_scc1 L_fin
          s_lshl_b32 s54, s54, 11
          v_add_u32 v{VT}, s54, v{X(3)}
          s_nop 3
          ds_write_b128 v{VT}, v[{VACC}:{VACC+3}] offset:{L_P}
          ds_write_b128 v{VT}, v[{VACC+4}:{VACC+7}] offset:{L_P+1024}
          s_mov_b64 exec, 1
          ds_add_u32 v{VZ}, v{X(14)} offset:{L_F+16}
          s_mov_b64 exec, -1
          s_branch L_pub_done
          L_tch7:
          s_branch L_tch8
          L_fin:
          ds_read_b32 v{VT}, v{VZ} offset:{L_F+16}""")
    RD = [VT + 4, VT + 8, HR + 16, HR + 20, HR + 24, HR + 28]
    for k in range(3):
        for hf in range(2):
            A(f"ds_read_b128 v[{RD[2*k+hf]}:{RD[2*k+hf]+3}], v{X(3)} offset:{L_P + 2048*k + 1024*hf}")
    A(f"""s_sub_u32 s59, s59, 1
          s_cbranch_scc1 L_finx
          s_waitcnt lgkmcnt({lg(6)})
          v_cmp_gt_u32 vcc, 3, v{VT}
          s_cbranch_vccnz L_fin
          L_finx:
          s_waitcnt lgkmcnt({lg(4)})""")
    for hf in range(2):
        for r in range(4): A(f"v_add_f32 v{VACC+4*hf+r}, v{VACC+4*hf+r}, v{RD[hf]+r}")
    A("s_waitcnt lgkmcnt(0)")
    for hf in range(2):
        for r in range(4): A(f"v_add_f32 v{RD[2+hf]+r}, v{RD[2+hf]+r}, v{RD[4+hf]+r}")
        for r in range(4): A(f"v_add_f32 v{VACC+4*hf+r}, v{VACC+4*hf+r}, v{RD[2+hf]+r}")
        for r in range(4): A(f"v_and_or_b32 v{VACC+4*hf+r}, v{VACC+4*hf+r}, v{X(13)}, s{68+r}")
        A(f"buffer_store_dwordx4 v[{VACC+4*hf}:{VACC+4*hf+3}], v{X(4)}, s[40:43], {'s26' if hf else 's16'} offen sc1")
    stamp(5)
    A("L_pub_done:")
    if pbar: A("s_barrier")
    stamp(6)
    G0 = VQ
    DB = HR + 12
    A(f"""buffer_load_dwordx4 v[{G0}:{G0+3}], v{X(5)}, s[40:43], s17 offen sc1
          buffer_load_dwordx4 v[{G0+4}:{G0+7}], v{X(5)}, s[40:43], s17 offen offset:2048 sc1
          s_mov_b32 s59, {spin}
          s_waitcnt vmcnt(2)""")
    stamp(11)
    A(f"""v_mfma_f32_16x16x32_bf16 v[{DB}:{DB+3}], v[{HR+4}:{HR+7}], v[{VW+16}:{VW+19}], 0
          s_cmp_eq_u32 s44, 3
          s_cbranch_scc1 L_p1c
          v_mfma_f32_16x16x32_bf16 v[{DB}:{DB+3}], v[{HR+8}:{HR+11}], v[{VW+20}:{VW+23}], v[{DB}:{DB+3}]
          s_branch L_p1c
          L_p1:
          s_mov_b64 exec, vcc
          buffer_load_dwordx4 v[{G0}:{G0+3}], v{X(5)}, s[40:43], s17 offen sc1
          buffer_load_dwordx4 v[{G0+4}:{G0+7}], v{X(5)}, s[40:43], s17 offen offset:2048 sc1
          L_p1c:
          s_waitcnt vmcnt(0)""")
    for k in range(8): A(f"v_xor_b32 v{G0+k}, s{68+(k&3)}, v{G0+k}")
    A(f"""v_or3_b32 v{VT}, v{G0}, v{G0+1}, v{G0+2}
          v_or3_b32 v{VT+1}, v{G0+3}, v{G0+4}, v{G0+5}
          v_or3_b32 v{VT}, v{VT}, v{G0+6}, v{G0+7}
          v_bitop3_b32 v{VT}, v{VT}, v{VT+1}, v{X(13)} bitop3:0x54
          s_sub_u32 s59, s59, 1
          v_cmp_ne_u32 vcc, 0, v{VT}
          s_cbranch_scc1 L_p1ok
          s_cbranch_vccnz L_p1
          L_p1ok:
          s_mov_b64 exec, -1""")
    stamp(7)
    for r in range(4): A(f"v_add_f32 v{G0+r}, v{G0+r}, v{G0+4+r}")
    for d in red:
        for r in range(4): A(f"v_add_f32_dpp v{G0+r}, v{G0+r}, v{G0+r} {d} {dppf}")
    for r in range(4): A(f"v_cvt_pk_bf16_f32 v{G0+r}, v{G0+r}, v{G0+r}")
    for t in range(4):
        for r in range(4): A(f"v_and_b32 v{VA+4*t+r}, v{G0+t}, v{VMASK+r}")
        if t >= 1:
            c = "0" if t == 1 else f"v[{VT}:{VT+3}]"
            A(f"v_mfma_f32_16x16x32_bf16 v[{VT}:{VT+3}], v[{VA+4*(t-1)}:{VA+4*(t-1)+3}], v[{VW+4*(t-1)}:{VW+4*(t-1)+3}], {c}")
    A(f"""s_nop 0
          v_mfma_f32_16x16x32_bf16 v[{VT}:{VT+3}], v[{VA+12}:{VA+15}], v[{VW+12}:{VW+15}], v[{VT}:{VT+3}]""")
    for r in range(4): A(f"v_mul_f32 v{DB+r}, v{DB+r}, v{HR+3}")
    A("s_mov_b32 s54, 0x427c0000\ns_nop 2")
    for r in range(4): A(f"v_fmac_f32 v{DB+r}, v{HR+2}, v{VT+r}")
    A(f"""ds_write_b128 v{X(8)}, v[{DB}:{DB+3}] offset:{L_R}
          s_cmp_ge_u32 s44, s39
          s_waitcnt lgkmcnt(0)
          s_barrier""")
    stamp(8)
    A("s_cbranch_scc1 L_sdone")
    for w in range(4):
        A(f"ds_read2st64_b32 v[{20+2*w}:{21+2*w}], v{X(9)} offset0:{(L_R + 1024*w)//256} offset1:{(L_R + 1024*w + 512)//256}")
    A(f"""s_mov_b32 exec_lo, 0x01ff01ff
          s_mov_b32 exec_hi, 0x01ff01ff
          s_waitcnt lgkmcnt({lg(2)})
          v_add_f32 v20, v20, v22
          v_add_f32 v21, v21, v23
          s_waitcnt lgkmcnt(0)
          v_add_f32 v24, v24, v26
          v_add_f32 v25, v25, v27
          v_add_f32 v20, v20, v24
          v_add_f32 v21, v21, v25
          v_cndmask_b32 v22, v20, 1.0, s[60:61]
          v_cndmask_b32 v23, v21, 1.0, s[60:61]
          buffer_atomic_add_f32 v22, v{X(10)}, s[40:43], s18 offen sc0 sc1
          buffer_atomic_add_f32 v23, v{X(10)}, s[40:43], s18 offen offset:2048 sc0 sc1
          s_waitcnt vmcnt(0)""")
    stamp(9)
    A(f"""v_cmp_eq_f32 vcc, s54, v22
          v_cmp_eq_f32 s[58:59], s54, v23
          v_add_f32 v20, v20, v22
          v_add_f32 v21, v21, v23
          s_and_b64 s[56:57], vcc, s[60:61]
          s_and_b64 s[58:59], s[58:59], s[60:61]
          v_cvt_pk_bf16_f32 v20, v20, v21
          s_lshr_b64 s[62:63], s[58:59], 8
          s_sub_u32 exec_lo, s58, s62
          s_sub_u32 exec_hi, s59, s63
          s_cbranch_execz L_no1
          buffer_store_short_d16_hi v20, v{X(11)}, s[20:23], s19 offen offset:896 {osc}
          L_no1:
          s_lshr_b64 s[62:63], s[56:57], 8
          s_sub_u32 exec_lo, s56, s62
          s_sub_u32 exec_hi, s57, s63
          s_cbranch_execz L_sdone
          buffer_store_short v20, v{X(11)}, s[20:23], s19 offen {osc}
          s_cmp_eq_u32 s19, 0
          s_cbranch_scc0 L_sdone
          s_bitcmp1_b32 s56, 8
          s_cbranch_scc0 L_sdone
          s_mov_b64 exec, 1
          v_mov_b32 v20, s67
          buffer_store_dword v20, v{X(11)}, s[40:43], 0 offen sc1""")
    A("L_sdone:")
    dump(12)
    A("s_endpgm")

    L.append(f".fill ((({KNAME} - .) & 4095) >> 2), 4, 0xbf810000")
    if touch: A("L_tch1:\ns_branch L_tback")
    A("L_helper:")
    instream[0] = False
    if hexit == 1:
        A(f"""v_mov_b32 v36, 0
              v_mov_b32 v37, 3
              ds_write_b32 v36, v37 offset:{L_F}
              s_waitcnt vmcnt(0) lgkmcnt(0)
              s_branch L_hlast""")
    HX = 16
    HW = 32
    HD = 88
    A(f"""v_lshrrev_b32 v1, 2, v3
          v_lshl_add_u32 v1, v2, 2, v1
          v_lshlrev_b32 v8, 7, v1
          v_and_b32 v6, 3, v3
          v_lshl_add_u32 v8, v6, 3, v8
          v_bfe_u32 v1, v1, 1, 2
          v_lshlrev_b32 v1, 5, v1
          v_add_u32 v8, v8, v1
          v_xor_b32 v9, 32, v8
          v_xor_b32 v10, 64, v8
          v_xor_b32 v11, 0x60, v8
          v_and_b32 v14, 1, v3
          v_mul_u32_u24 v6, 896, v14
          v_lshl_add_u32 v6, v2, 3, v6
          v_bfe_u32 v7, v3, 1, 2
          v_lshl_add_u32 v7, v7, 2, v2
          v_lshlrev_b32 v7, 4, v7
          v_mov_b32 v15, 0xffffff00
          v_mov_b32 v30, 0
          v_and_b32 v1, 2, v3
          v_cmp_ne_u32 s[60:61], 0, v1
          v_and_b32 v1, 4, v3
          v_cmp_ne_u32 s[62:63], 0, v1
          s_waitcnt lgkmcnt(0)
          s_add_u32 s46, s46, 0x01010101
          s_and_b32 s50, s46, 0xff
          s_bfe_u32 s51, s46, 0x80008
          s_bfe_u32 s52, s46, 0x80010
          s_lshr_b32 s53, s46, 24""")
    A(f"""s_lshl_b32 s57, s64, 13
          s_lshl_b32 s58, s31, 11
          s_add_u32 s57, s57, s58
          s_lshl_b32 s58, s30, 8
          s_add_u32 s57, s57, s58
          s_add_u32 s57, s57, {W_Q}
          s_lshr_b32 s58, s2, 4
          s_lshl_b32 s58, s58, 13
          s_add_u32 s58, s58, {W_Q}
          v_add_u32 v105, 0x1000, v5
          s_mul_i32 s44, s31, 224
          v_add_u32 v1, s44, v6
          v_lshl_add_u32 v104, v14, 16, v7
          s_mov_b32 s47, 0
          s_waitcnt vmcnt(16)""")
    if gearly:
        A(f"""s_cmp_lt_u32 s67, {0 if noglu else 14}
              s_cbranch_scc1 L_tile""")
    A("s_waitcnt vmcnt(2)")
    stamp(1)
    A("L_tile:")
    for k in range(7):
        A(f"ds_read_b64 v[{HX+2*k}:{HX+2*k+1}], v1 offset:{L_X + 32*k}")
        for ct in range(4):
            r = HW + 14 * ct + 2 * k
            A(f"ds_read_b64_tr_b16 v[{r}:{r+1}], v{8+ct} offset:{L_W + 2048*k}")
    A("s_waitcnt lgkmcnt(0)")
    for ct in range(4):
        r = HW + 14 * ct + 12
        A(f"v_mfma_f32_16x16x16_bf16 v[{HD+4*ct}:{HD+4*ct+3}], v[{r}:{r+1}], v[{HX+12}:{HX+13}], 0")
    A("s_nop 2")
    for k2 in range(3):
        for ct in range(4):
            r = HW + 14 * ct + 4 * k2
            A(f"v_mfma_f32_16x16x32_bf16 v[{HD+4*ct}:{HD+4*ct+3}], v[{r}:{r+3}], v[{HX+4*k2}:{HX+4*k2+3}], v[{HD+4*ct}:{HD+4*ct+3}]")
    A("s_nop 5")
    for r in range(4): A(f"v_cndmask_b32 v{HD+r}, v{HD+r}, v{HD+4+r}, s[60:61]")
    for r in range(4): A(f"v_cndmask_b32 v{HD+8+r}, v{HD+8+r}, v{HD+12+r}, s[60:61]")
    for r in range(4): A(f"v_cndmask_b32 v{HD+r}, v{HD+r}, v{HD+8+r}, s[62:63]")
    for r in range(4): A(f"v_and_or_b32 v{HD+r}, v{HD+r}, v15, s{50+r}")
    A(f"""s_mov_b32 exec_lo, 0x00ff00ff
          s_mov_b32 exec_hi, 0x00ff00ff
          buffer_store_dwordx4 v[{HD}:{HD+3}], v104, s[40:43], s57 offen sc1
          s_mov_b64 exec, -1
          s_cmp_eq_u32 s47, 1
          s_cbranch_scc1 L_tiledone""")
    stamp(2)
    A(f"""s_cmp_ge_u32 s67, {0 if noglu else 14}
          s_cbranch_scc1 L_tiledone""")
    if not gearly: glu_dma()
    A(f"""s_mov_b32 s47, 1
          s_mul_i32 s57, s54, {2*7168}
          s_lshl_b32 s44, s55, 8
          s_add_u32 s57, s57, s44
          s_add_u32 s57, s57, {W_G}
          s_mul_i32 s44, s56, 224
          v_add_u32 v1, s44, v6
          v_mul_u32_u24 v104, 7168, v14
          v_add_u32 v104, v104, v7""")
    for ct in range(4): A(f"v_add_u32 v{8+ct}, {L_W2 - L_W}, v{8+ct}")
    A(f"""s_waitcnt vmcnt({1 if gearly else 0})
          s_branch L_tile""")
    if touch: A("L_tch2:\ns_branch L_tback")
    A("L_tiledone:")
    stamp(4)
    HG = 100
    A(f"""v_lshrrev_b32 v4, 5, v0
          v_mul_u32_u24 v4, 896, v4
          v_add_u32 v4, v4, v107
          ds_read_b128 v[40:43], v4 offset:{L_X}
          ds_read_b128 v[44:47], v4 offset:{L_X+16}
          v_mov_b32 v{HG}, 0
          s_mov_b32 exec_lo, 0x0fffffff
          s_mov_b32 exec_hi, 0x0fffffff
          s_waitcnt vmcnt(1) lgkmcnt(0)""")
    for k in range(8):
        A(f"""v_lshlrev_b32 v48, 16, v{108+k}
              v_and_b32 v49, 0xffff0000, v{108+k}
              v_lshlrev_b32 v50, 16, v{40+k}
              v_and_b32 v51, 0xffff0000, v{40+k}
              v_mul_f32 v48, v48, v50
              v_mul_f32 v49, v49, v51
              v_cvt_pk_bf16_f32 v48, v48, v49
              v_lshlrev_b32 v49, 16, v48
              v_and_b32 v48, 0xffff0000, v48
              v_add_f32 v{HG}, v{HG}, v49
              v_add_f32 v{HG}, v{HG}, v48""")
    A("s_mov_b64 exec, -1")
    for d in red + ("row_mirror",):
        A(f"s_nop 1\nv_add_f32_dpp v{HG}, v{HG}, v{HG} {d} {dppf}")
    A(f"""v_mov_b32 v48, v{HG}
          s_nop 1
          v_permlane16_swap_b32 v{HG}, v48
          v_add_f32 v{HG}, v{HG}, v48
          v_cvt_pk_bf16_f32 v{HG}, v{HG}, v{HG}
          v_and_b32 v{HG}, 0xffff0000, v{HG}
          v_mul_f32 v{HG}, 0x{f2u(-LOG2E):08x}, v{HG}
          v_exp_f32 v{HG}, v{HG}
          s_nop 0
          v_add_f32 v{HG}, 1.0, v{HG}
          v_rcp_f32 v{HG}, v{HG}
          s_nop 0
          v_cvt_pk_bf16_f32 v{HG}, v{HG}, v{HG}
          v_and_b32 v{HG}, 0xffff0000, v{HG}
          v_sub_f32 v{HG+1}, 1.0, v{HG}
          v_cvt_pk_bf16_f32 v{HG+1}, v{HG+1}, v{HG+1}
          v_and_b32 v{HG+1}, 0xffff0000, v{HG+1}
          v_lshrrev_b32 v1, 2, v0
          s_mov_b32 exec_lo, 1
          s_mov_b32 exec_hi, 1
          ds_write_b64 v1, v[{HG}:{HG+1}] offset:{L_GT}
          s_mov_b64 exec, -1""")
    A(f"""s_lshr_b32 s56, s2, 1
          s_lshl_b32 s56, s56, 7
          s_bitcmp1_b32 s2, 0
          s_cselect_b32 s57, {W_A - W_CNT}, 0
          s_add_u32 s56, s56, s57
          s_add_u32 s56, s56, {W_CNT}
          v_lshlrev_b32 v1, 2, v0
          s_and_b32 s57, s2, 3
          s_cmp_eq_u32 s57, 2
          s_cbranch_scc1 L_nozero
          s_mov_b64 exec, 0xffff
          buffer_store_dword v30, v1, s[40:43], s56 offen sc1
          s_mov_b64 exec, -1
          L_nozero:""")
    def check(base, n, lab):
        for k in range(n):
            for r in range(4): A(f"v_xor_b32 v{base+4*k+r}, s{50+r}, v{base+4*k+r}")
        regs = [base + i for i in range(4 * n)]
        A(f"v_or3_b32 v1, v{regs[0]}, v{regs[1]}, v{regs[2]}")
        i = 3
        while i < len(regs):
            if i + 1 < len(regs): A(f"v_or3_b32 v1, v1, v{regs[i]}, v{regs[i+1]}"); i += 2
            else: A(f"v_or_b32 v1, v1, v{regs[i]}"); i += 1
        A(f"""v_and_b32 v1, 0xff, v1
              v_cmp_ne_u32 vcc, 0, v1
              s_sub_u32 s59, s59, 1
              s_cbranch_scc1 {lab}ok
              s_cbranch_vccz {lab}ok
              s_mov_b64 exec, vcc
              s_branch {lab}
              {lab}ok:
              s_mov_b64 exec, -1""")
    A(f"s_mov_b32 s59, {spin}")
    A("L_qpoll:")
    for rb in range(4):
        for hf in range(2):
            o = rb * 2048 + hf * 1024
            A(f"buffer_load_dwordx4 v[{32+8*rb+4*hf}:{35+8*rb+4*hf}], {'v5' if o < 4096 else 'v105'}, s[40:43], s58 offen offset:{o & 4095} sc1")
    A("s_waitcnt vmcnt(0)")
    check(32, 8, "L_qpoll")
    for r in range(8): A(f"v_add_f32 v{32+r}, v{32+r}, v{40+r}")
    for r in range(8): A(f"v_add_f32 v{48+r}, v{48+r}, v{56+r}")
    for r in range(8): A(f"v_add_f32 v{32+r}, v{32+r}, v{48+r}")
    for r in range(4): A(f"v_cvt_pk_bf16_f32 v{32+r}, v{32+2*r}, v{33+2*r}")
    A(f"""v_lshlrev_b32 v1, 3, v0
          v_mov_b32 v37, 1
          ds_write_b64 v1, v[32:33] offset:{L_Q}
          ds_write_b64 v1, v[34:35] offset:{L_Q+512}
          s_waitcnt lgkmcnt(0)
          ds_write_b32 v30, v37 offset:{L_F}""")
    stamp(3)
    if hexit == 2:
        A(f"""v_mov_b32 v37, 3
              ds_write_b32 v30, v37 offset:{L_F}
              s_waitcnt vmcnt(0) lgkmcnt(0)
              s_branch L_hlast""")
    if touch: A("s_branch L_tch5")
    A("L_tch8:")
    ldswait("L_pw", L_F + 4, 4, 30, 31, sleep=4)
    SP = {n: 6 + i for i, n in enumerate(dorder)}
    A(f"""ds_read_b128 v[32:35], v5 offset:{L_S}
          ds_read_b128 v[36:39], v5 offset:{L_S+1024}
          s_lshr_b32 s44, s2, 4
          s_lshl_b32 s44, s44, 15
          s_add_u32 s44, s44, {W_S}""")
    dep("s44", "s44", "s2", ["x0", "x1", "x2", "p"], SP)
    A("v_and_b32 v4, 3, v0\nv_lshlrev_b32 v4, 4, v4")
    for i, nm in enumerate(["w0", "w1", "t0", "t1"]):
        A(f"v_bfe_u32 v1, v0, {2+i}, 1\nv_lshl_add_u32 v4, v1, {SP[nm]}, v4")
    A(f"""s_lshl_b32 s45, s2, 2
          s_add_u32 s45, s45, {W_R}
          s_waitcnt lgkmcnt(0)""")
    def lanes(n):
        lo = (1 << min(n, 32)) - 1; hi = (1 << max(n - 32, 0)) - 1
        A(f"s_mov_b32 exec_lo, 0x{lo:x}\ns_mov_b32 exec_hi, 0x{hi:x}")
    if PT < 4: lanes(PT * 16)
    if not noexp: A(f"buffer_store_dwordx4 v[32:35], v4, s[40:43], s44 offen {efl}")
    if PT > 4 and not noexp:
        lanes((PT - 4) * 16)
        A(f"buffer_store_dwordx4 v[36:39], v4, s[40:43], s44 offen offset:{1 << SP['t2']} {efl}")
    A("""s_mov_b64 exec, 1
         v_mov_b32 v1, s46
         s_waitcnt vmcnt(0)
         buffer_store_dword v1, v5, s[40:43], s45 offen sc1
         s_mov_b64 exec, -1""")
    stamp(5)
    A(f"""v_and_b32 v1, 3, v0
          v_lshlrev_b32 v1, 1, v1
          v_bfe_u32 v14, v0, 2, 1
          v_add_u32 v1, v1, v14
          v_mul_u32_u24 v4, 7168, v1
          v_min_u32 v1, 6, v13
          v_lshl_add_u32 v4, v1, 4, v4
          s_mul_i32 s44, s65, 112
          s_add_u32 s44, s44, {W_G}
          s_add_u32 s45, s44, {8*7168}
          s_mov_b32 s59, {0 if (noglu or nogp) else spin}
          L_gpoll:""")
    if not nogp: A("""buffer_load_dwordx4 v[32:35], v4, s[40:43], s44 offen sc1
          buffer_load_dwordx4 v[36:39], v4, s[40:43], s45 offen sc1""")
    A("s_waitcnt vmcnt(0)")
    check(32, 2, "L_gpoll")
    for d in red[:2]:
        for r in range(8): A(f"v_add_f32_dpp v{32+r}, v{32+r}, v{32+r} {d} {dppf}")
    for r in range(4): A(f"v_cvt_pk_bf16_f32 v{36+r}, v{32+r}, v{36+r}")
    for r in range(4): A(f"v_lshlrev_b32 v{32+r}, 16, v{36+r}")
    for r in range(4): A(f"v_and_b32 v{36+r}, 0xffff0000, v{36+r}")
    for r in range(4): A(f"v_mul_f32 v{32+r}, 0x{f2u(-LOG2E):08x}, v{32+r}")
    for r in range(4): A(f"v_exp_f32 v{32+r}, v{32+r}")
    for r in range(4): A(f"v_add_f32 v{32+r}, 1.0, v{32+r}")
    for r in range(4): A(f"v_rcp_f32 v{32+r}, v{32+r}")
    for r in range(4): A(f"v_cvt_pk_bf16_f32 v{32+r}, v{32+r}, v{32+r}")
    for r in range(4): A(f"v_and_b32 v{32+r}, 0xffff0000, v{32+r}")
    for r in range(4): A(f"v_mul_f32 v{32+r}, v{32+r}, v{36+r}")
    for r in range(4): A(f"v_cvt_pk_bf16_f32 v{32+r}, v{32+r}, v{32+r}")
    A(f"""v_mul_u32_u24 v1, 112, v14
          v_lshl_add_u32 v1, v13, 4, v1
          s_mov_b32 exec_lo, 0x11111111
          s_mov_b32 exec_hi, 0x00111111
          ds_write_b128 v1, v[32:35] offset:{L_H}
          s_mov_b64 exec, -1""")
    stamp(6)
    ldswait("L_kw", L_F + 8, 4, 30, 31, sleep=8)
    for k in range(4): A(f"ds_read_b128 v[{32+4*k}:{35+4*k}], v5 offset:{L_S + 1024*k}")
    A(f"""s_mov_b32 s47, 0x{f2u(LOG2E/16):08x}
          s_waitcnt lgkmcnt(0)""")
    for k in range(4):
        for d in range(4):
            h, o = d >> 1, 4 * k + 2 * (d & 1)
            A(f"v_lshlrev_b32 v{48+16*h+o}, 16, v{32+4*k+d}")
            A(f"v_and_b32 v{48+16*h+o+1}, 0xffff0000, v{32+4*k+d}")
    def allred(op, regs, full=True):
        for d in red + ("row_mirror",):
            A("s_nop 0" if len(regs) > 1 else "s_nop 1")
            for r in regs: A(f"{op}_dpp v{r}, v{r}, v{r} {d} {dppf}")
        if full:
            for sw in ("v_permlane16_swap_b32", "v_permlane32_swap_b32"):
                for r in regs: A(f"v_mov_b32 v{r+2}, v{r}")
                A("s_nop 1")
                for r in regs: A(f"{sw} v{r}, v{r+2}")
                for r in regs: A(f"{op} v{r}, v{r}, v{r+2}")
    for h in range(2):
        b = 48 + 16 * h
        A(f"v_max3_f32 v{32+h}, v{b}, v{b+1}, v{b+2}")
        for i in range(3, 15, 2): A(f"v_max3_f32 v{32+h}, v{32+h}, v{b+i}, v{b+i+1}")
        A(f"v_max_f32 v{32+h}, v{32+h}, v{b+15}")
    allred("v_max_f32", [32, 33])
    for h in range(2): A(f"v_mul_f32 v{32+h}, s47, v{32+h}")
    for i in range(32): A(f"v_fma_f32 v{48+i}, v{48+i}, s47, -v{32+(i>>4)}")
    for i in range(32): A(f"v_exp_f32 v{48+i}, v{48+i}")
    for h in range(2): A(f"v_add_f32 v{36+h}, v{48+16*h}, v{49+16*h}")
    for i in range(2, 16):
        for h in range(2): A(f"v_add_f32 v{36+h}, v{36+h}, v{48+16*h+i}")
    allred("v_add_f32", [36, 37])
    A(f"""v_log_f32 v36, v36
          v_log_f32 v37, v37
          v_mov_b32 v35, s46
          v_add_f32 v32, v32, v36
          v_add_f32 v34, v33, v37
          v_mov_b32 v33, s46
          s_lshl_b32 s44, s2, 4
          s_add_u32 s44, s44, {W_T}
          s_mov_b64 exec, 1
          buffer_store_dwordx4 v[32:35], v5, s[40:43], s44 offen sc1
          s_mov_b64 exec, -1""")
    stamp(7)
    A(f"""s_mov_b32 s59, {spin}
          s_mov_b32 s45, {W_R}
          L_rpoll:
          buffer_load_dwordx4 v[40:43], v5, s[40:43], s45 offen sc1
          s_sub_u32 s59, s59, 1
          s_cbranch_scc1 L_rok
          s_waitcnt vmcnt(0)
          v_xor_b32 v40, s46, v40
          v_xor_b32 v41, s46, v41
          v_xor_b32 v42, s46, v42
          v_xor_b32 v43, s46, v43
          v_or3_b32 v40, v40, v41, v42
          v_or_b32 v40, v40, v43
          v_cmp_ne_u32 vcc, 0, v40
          s_cbranch_vccnz L_rpoll
          L_rok:
          v_mov_b32 v37, 2
          ds_write_b32 v30, v37 offset:{L_F}""")
    stamp(8)
    if tlate: ldswait("L_tw", L_F + 20, 1, 30, 31, sleep=8)
    A(f"""s_and_b32 s44, s44, 0xffffff00
          v_lshlrev_b32 v1, 4, v3
          s_mov_b32 s59, {spin}
          s_branch L_tpoll1
          L_tpoll:
          s_sleep 16
          L_tpoll1:
          buffer_load_dwordx4 v[40:43], v1, s[40:43], s44 offen sc1
          s_sub_u32 s59, s59, 1
          s_cbranch_scc1 L_tok
          s_waitcnt vmcnt(0)
          v_cmp_ne_u32 vcc, s46, v41
          v_cmp_ne_u32 s[60:61], s46, v43
          s_or_b64 vcc, vcc, s[60:61]
          s_cbranch_scc1 L_tpoll
          L_tok:
          s_waitcnt vmcnt(0)
          v_mov_b32 v32, v40
          v_mov_b32 v33, v42""")
    allred("v_max_f32", [32, 33], full=False)
    A("""v_sub_f32 v36, v40, v32
         v_sub_f32 v37, v42, v33
         v_exp_f32 v36, v36
         v_exp_f32 v37, v37
         s_nop 0""")
    allred("v_add_f32", [36, 37], full=False)
    A(f"""v_log_f32 v36, v36
          v_log_f32 v37, v37
          v_mov_b32 v34, 3
          v_add_f32 v32, v32, v36
          v_add_f32 v33, v33, v37
          ds_write_b64 v30, v[32:33] offset:{L_LS}
          s_waitcnt lgkmcnt(0)
          ds_write_b32 v30, v34 offset:{L_F}
          s_waitcnt lgkmcnt(0)""")
    A("L_hlast:")
    stamp(9)
    dump(10)
    A("L_end:")
    A("s_endpgm")
    L.append('.section .rodata,"a"')
    L.append(".p2align 6")
    L.append(f".amdhsa_kernel {KNAME}")
    L.append("""  .amdhsa_next_free_vgpr 212
  .amdhsa_next_free_sgpr 102
  .amdhsa_accum_offset 212
  .amdhsa_group_segment_fixed_size 0
  .amdhsa_kernarg_size 104
  .amdhsa_user_sgpr_count 2
  .amdhsa_user_sgpr_kernarg_segment_ptr 1
  .amdhsa_system_sgpr_workgroup_id_x 1
.end_amdhsa_kernel""")
    return "\n".join(L) + "\n"

if __name__ == "__main__":
    kw = json.loads(sys.argv[1]) if len(sys.argv) > 1 else {}
    sys.stdout.write(gen(**kw))
```

```python
import sys, json, struct
KNAME = "gated_mix__gqa_block_cached__glu_gated_glu__decode_kernel"

HEADER = """; Kernarg layout for this problem (104 bytes, ptrs only, base s[0:1]):
;   offset   0: d_in[0] A_x  shape=(2, 1, 448) dtype=bfloat16
;   offset   8: d_in[1] A_k_cache  shape=(2, 8, 16384, 256) dtype=bfloat16
;   offset  16: d_in[2] A_v_cache  shape=(2, 8, 16384, 256) dtype=bfloat16
;   offset  24: d_in[3] A_wq  shape=(448, 4096) dtype=bfloat16
;   offset  32: d_in[4] A_wo  shape=(4096, 448) dtype=bfloat16
"""

W_CNT   = 0x70000
W_Q     = 0x8000
W_G     = 0x30000
W_A     = 0x50000
W_T     = 0x61000
W_O     = 0x80000
W_S     = 0x100000
W_DBG   = 0x400000
W_SIZE  = 0x800000

L_X   = 0
L_W   = 2048
L_Q   = 16384
L_F   = 17408
L_GT  = 17536
L_LS  = 17600
L_H   = 17664
L_P   = 18432
L_R   = 26624
L_S   = 30720
L_WW  = 34816
L_WD  = 51200
LDS_SIZE = 59392

NH, NS = 10, 12
LOG2E = 1.4426950408889634
def f2u(x): return struct.unpack("<I", struct.pack("<f", x))[0]
dppf = "row_mask:0xf bank_mask:0xf"
red = ("quad_perm:[1,0,3,2]", "quad_perm:[2,3,0,1]", "row_half_mirror")

def gen(order="q w0 w1 h p t0 t1 t2 x0 x1 x2 t3", PT=3, HT=8, odd="37", tlate=4, dbg=0, spin=200000, ksplit=0, astr=128, cmt=0, oddv=None, xe=0, vpad=0, ptouch=0, cs=512, one=1, rmap=1, word=0, pk=2, bdep=0, bsl=3, ms=2):
    oddc = [odd]
    NB, WG = 4, 4
    pos = {n: 11 + i for i, n in enumerate(order.split())}
    dorder = [n for n in order.split() if n not in ('q', 'h', 't3')]
    assert dorder[3:6] == ['t0', 't1', 't2'] and PT <= 4
    U = PT * 16
    SV = 16 - PT
    L = []
    def A(s):
        for line in s.split("\n"):
            line = line.strip()
            if line: L.append(("" if line.endswith(":") else "    ") + line)
    def C(s): L.append("; " + s)
    instream = [False]
    def stamp(k):
        if dbg == 4 and (k not in (0, 4, 9) or (k and not instream[0])): return
        if dbg: A(f"s_memrealtime s[{72+2*k}:{73+2*k}]")
    def dump(n):
        if not dbg: return
        A("s_waitcnt lgkmcnt(0)")
        A("s_mul_i32 s60, s2, 5\ns_add_u32 s60, s60, s3\ns_lshl_b32 s60, s60, 6")
        A(f"s_add_u32 s60, s60, {W_DBG}\ns_mov_b64 exec, 1\nv_mov_b32 v1, 0")
        for k in range(n):
            A(f"v_mov_b32 v2, s{72+2*k}\nbuffer_store_dword v2, v1, s[40:43], s60 offen offset:{4*k}")
        A("s_getreg_b32 s61, hwreg(HW_REG_XCC_ID)\nv_mov_b32 v2, s61\nbuffer_store_dword v2, v1, s[40:43], s60 offen offset:60")
        A("v_mov_b32 v2, s46\nbuffer_store_dword v2, v1, s[40:43], s60 offen offset:56")
    def dep(dst, base, src, names, P, tmp="s48"):
        i = 0
        while i < len(names):
            j = i
            while j + 1 < len(names) and P[names[j + 1]] == P[names[j]] + 1: j += 1
            A(f"s_bfe_u32 {tmp}, {src}, 0x{((j - i + 1) << 16) | i:x}")
            A(f"s_lshl_b32 {tmp}, {tmp}, {P[names[i]]}")
            A(f"s_add_u32 {dst}, {base}, {tmp}")
            base = dst; i = j + 1
    TN = ["t0", "t1", "t2", "t3"]
    def tconst(t): return sum(((t >> i) & 1) << pos[TN[i]] for i in range(4))
    def ldswait(lab, off, val, vz, vt, sleep=0):
        A(f"s_mov_b32 s59, {spin*8}\n{lab}:")
        if sleep: A(f"s_sleep {sleep}")
        A(f"""ds_read_b32 v{vt}, v{vz} offset:{off}
              s_sub_u32 s59, s59, 1
              s_cbranch_scc1 {lab}x
              s_waitcnt lgkmcnt(0)
              v_cmp_gt_u32 vcc, {val}, v{vt}
              s_cbranch_vccnz {lab}
              {lab}x:""")
    def consumer(sR, sC):
        A(f"""s_lshr_b32 {sC}, s2, 3
              s_min_u32 {sC}, {sC}, 27
              s_mul_i32 {sR}, {sC}, 37
              s_lshr_b32 {sR}, {sR}, 8
              s_mul_i32 s48, {sR}, 7
              s_sub_u32 {sC}, {sC}, s48
              s_and_b32 s48, s2, 7""")
        if rmap == 0: A(f"s_lshl_b32 {sR}, {sR}, 3")
        else: A("s_lshl_b32 s48, s48, 2")
        A(f"s_add_u32 {sR}, {sR}, s48")
    assert all((k * 37) >> 8 == k // 7 for k in range(28))
    def page(): L.append(f".fill ((({KNAME} - .) & 4095) >> 2), 4, 0xbf810000")

    L.append(HEADER.rstrip())
    L.append(f"; @launch grid=(256,1,1) block=(320,1,1) lds={LDS_SIZE}")
    L.append('.amdgcn_target "amdgcn-amd-amdhsa--gfx950"')
    L.append(".text")
    L.append(f".globl {KNAME}")
    L.append(".p2align 12")
    L.append(f".fill {(4096-768)//4}, 4, 0xbf810000")
    L.append(".p2align 8")
    L.append(f".type {KNAME},@function")
    L.append(f"{KNAME}:")
    C("---- entry: v0 lane, v2 = lane>>4, v3 = lane&15, s3 wave; s30 = wg&7, s31 = b*2 + (wg>>3&1), s64 kv head, s65 = s64*8+s30, s66 = b*16 + split")
    A("s_cmp_ge_u32 s2, 256")
    A("s_cbranch_scc1 L_end")
    stamp(0)
    if dbg:
        for k in range(1, 12): A(f"s_mov_b32 s{72+2*k}, 0")
    A(f"""s_load_dwordx16 s[4:19], s[0:1], 0
          s_load_dwordx8 s[20:27], s[0:1], 64
          s_load_dwordx2 s[28:29], s[0:1], 96
          v_lshrrev_b32 v1, 6, v0
          v_and_b32 v0, 63, v0
          v_readfirstlane_b32 s3, v1
          v_lshrrev_b32 v2, 4, v0
          v_and_b32 v3, 15, v0
          s_mov_b32 s35, 0x20000
          s_mov_b32 s39, 0x20000
          s_mov_b32 s43, 0x20000
          s_mov_b32 s42, {W_SIZE}
          s_and_b32 s30, s2, 7
          s_lshr_b32 s31, s2, 7
          s_lshl_b32 s66, s31, 4
          s_lshl_b32 s31, s31, 1
          s_bfe_u32 s64, s2, 0x10003
          s_add_u32 s31, s31, s64
          s_and_b32 s64, s2, 15
          s_add_u32 s66, s66, s64
          s_bfe_u32 s64, s2, 0x30004
          s_lshl_b32 s65, s64, 3
          s_add_u32 s65, s65, s30
          s_cmp_eq_u32 s3, 0
          s_cbranch_scc0 L_stream""")
    C("---- helper wave, first part: x and a 112 x 64 tile of wq to LDS, gate_w to registers")
    A(f"""v_mov_b32 v1, 0
          v_lshlrev_b32 v4, 2, v3
          v_lshrrev_b32 v13, 3, v0
          ds_write_b32 v4, v1 offset:{L_F}
          v_and_b32 v12, 6, v13
          v_xor_b32 v12, v12, v0
          v_and_b32 v12, 7, v12
          v_lshlrev_b32 v12, 4, v12
          v_lshl_add_u32 v4, v13, 13, v12
          v_lshlrev_b32 v5, 4, v0
          v_and_b32 v107, 31, v0
          v_lshlrev_b32 v107, 5, v107
          s_mul_i32 s48, s31, {112*8192}
          s_lshl_b32 s44, s65, 7
          s_add_u32 s48, s48, s44
          s_mov_b32 s34, 1792
          s_mov_b32 s38, 3670016
          s_mov_b32 s70, 896
          s_mov_b32 s71, 0x20000
          s_mov_b32 m0, {L_X}
          s_waitcnt lgkmcnt(0)
          s_mov_b32 s36, s10
          s_mov_b32 s37, s11
          s_mov_b32 s32, s4
          s_mov_b32 s33, s5
          s_mov_b32 s68, s22
          s_mov_b32 s69, s23
          buffer_load_dwordx4 v5, s[32:35], 0 offen lds
          buffer_load_dwordx4 v5, s[32:35], 0 offen offset:1024 lds""")
    def tile_dma(lab, rowb):
        A(f"""s_mov_b32 m0, {L_W}
              s_nop 0
              {lab}:
              buffer_load_dwordx4 v4, s[36:39], s48 offen nt lds
              s_add_u32 m0, m0, 1024
              s_add_u32 s48, s48, {8*rowb}
              s_cmp_lt_u32 m0, {L_W + 14*1024}
              s_cbranch_scc1 {lab}""")
    tile_dma("L_qdma", 8192)
    A("""buffer_load_dwordx4 v[108:111], v107, s[68:71], 0 offen
         buffer_load_dwordx4 v[112:115], v107, s[68:71], 0 offen offset:16
         s_barrier
         s_load_dword s46, s[28:29], 0
         s_mov_b32 s40, s28
         s_mov_b32 s41, s29
         s_branch L_helper""")

    VZ, VSA, VQ, VMASK, VACC = 6, 7, 8, 16, 20
    VM, VMC, VGS = 28, 29, 30
    VS = VA = 32
    VT = 48
    VSC = 60
    VB = 64
    VW = VB + 64
    HR = VB + 96
    VX = 192
    VO = 208
    X = lambda k: VX + k
    def buf(n): return VB + 32 * n
    C("---- streaming waves: s44 = wave-1, s47 group base, s38 own base, s45 tile offset")
    A("L_stream:")
    instream[0] = True
    A(f"""v_lshrrev_b32 v{VO}, 2, v3
          v_lshlrev_b32 v{VO}, 9, v{VO}
          v_lshl_add_u32 v{VO}, v2, 6, v{VO}
          v_and_b32 v6, 3, v3
          v_lshl_add_u32 v{VO}, v6, 4, v{VO}
          s_sub_u32 s44, s3, 1
          s_lshr_b32 s47, s2, 4
          s_lshl_b32 s47, s47, 23
          s_mov_b32 s34, 0x8000000""")
    def quads():
        A(f"""v_add_u32 v{VO+1}, {1 << pos['q']}, v{VO}
              v_add_u32 v{VO+2}, {1 << pos['h']}, v{VO}
              v_add_u32 v{VO+3}, {(1 << pos['h']) + (1 << pos['q'])}, v{VO}""")
    quads()
    dep("s45", "s47", "s2", ["x0", "x1", "x2", "p"], pos)
    dep("s45", "s45", "s44", ["w0", "w1"], pos)
    C("each wave branches through one later code line while the kernel arguments are in flight (instruction prefetch)")
    A("""s_cmp_eq_u32 s3, 1
         s_cbranch_scc1 L_tch1
         s_cmp_eq_u32 s3, 2
         s_cbranch_scc1 L_tch2
         s_cmp_eq_u32 s3, 3
         s_cbranch_scc1 L_tch3
         s_branch L_tch4
         L_tback:
         s_waitcnt lgkmcnt(0)
         s_mov_b32 s32, s6
         s_mov_b32 s33, s7
         s_barrier""")
    def ld(n, m): A(f"buffer_load_dwordx4 v[{buf(n)+4*m}:{buf(n)+4*m+3}], v{VO + (m >> 1)}, s[32:35], s45 offen offset:{256*(m & 1)} nt")
    def quad(n, k, extra=0, wait=True):
        for m in (2 * k, 2 * k + 1):
            if (m % 2 == 0 and wait) or str(m) in oddc[0]: A(f"s_waitcnt vmcnt({WG + (extra if m <= WG else 0)})")
            ld(n, m)
    for m in range(6): ld(0, m)
    C("constants: s[36:37] V, s[4:7] wo, s[8:11] w_down, s12/s13 their offsets, s[14:15] lane mask, s[50:51] ticket counter, s[24:25] arrival counter")
    A(f"""s_mov_b32 s38, s45
          s_load_dword s67, s[28:29], 0
          s_mov_b32 s36, s8
          s_mov_b32 s37, s9
          s_mov_b32 s40, s28
          s_mov_b32 s41, s29
          s_lshr_b32 s58, s2, 4
          s_lshl_b32 s48, s58, 2
          s_lshl_b32 s58, s58, 15
          s_add_u32 s58, s58, {W_S}
          s_lshr_b32 s27, s2, 1
          s_add_u32 s27, s44, s27
          s_and_b32 s27, s27, 3
          s_add_u32 s48, s48, s27
          s_lshl_b32 s27, s27, 7
          s_mul_i32 s48, s48, {cs}
          s_add_u32 s48, s48, {W_CNT}
          s_add_u32 s50, s28, s48
          s_addc_u32 s51, s29, 0
          s_mov_b32 s46, 0
          s_mov_b32 s52, 0x{f2u(LOG2E/16):08x}
          s_mov_b32 s53, 0
          s_mov_b32 s57, 0
          s_mov_b32 s4, s12
          s_mov_b32 s5, s13
          s_mov_b32 s6, 3670016
          s_mov_b32 s7, 0x20000
          s_mov_b32 s8, s20
          s_mov_b32 s9, s21
          s_mov_b32 s10, 1605632
          s_mov_b32 s11, 0x20000""")
    consumer("s14", "s15")
    A(f"""s_mul_i32 s12, s14, {128*896}
          s_lshl_b32 s48, s15, 7
          s_add_u32 s12, s12, s48
          s_mul_i32 s13, s14, {56*896}
          s_add_u32 s13, s13, s48
          v_lshrrev_b32 v1, 3, v0
          v_and_b32 v6, 6, v1
          v_xor_b32 v6, v6, v0
          v_and_b32 v6, 7, v6
          v_lshlrev_b32 v6, 4, v6
          v_mul_u32_u24 v{X(1)}, 896, v1
          v_add_u32 v{X(1)}, v{X(1)}, v6
          v_lshrrev_b32 v7, 5, v0
          v_mul_u32_u24 v7, {4*896}, v7
          v_add_u32 v{X(0)}, v{X(1)}, v7
          v_and_b32 v6, 1, v3
          v_cmp_eq_u32 vcc, 1, v6
          v_mov_b32 v7, 0xffff
          v_mov_b32 v{VT}, 0xffff0000
          v_cndmask_b32 v7, v7, v{VT}, vcc
          v_bfe_u32 v6, v3, 1, 2""")
    for r in range(4):
        A(f"""v_cmp_eq_u32 vcc, {r}, v6
              v_mov_b32 v{VACC+2*r}, 0
              v_mov_b32 v{VACC+2*r+1}, 0
              v_cndmask_b32 v{VMASK+r}, 0, v7, vcc""")
    A(f"""v_mov_b32 v{VM}, 0xff7fffff
          v_mov_b32 v{VZ}, 0
          v_lshrrev_b32 v1, 3, v3
          v_lshlrev_b32 v{X(2)}, 9, v1
          v_lshl_add_u32 v{X(2)}, v2, 6, v{X(2)}
          v_and_b32 v{VT}, 3, v3
          v_lshl_add_u32 v{X(2)}, v{VT}, 4, v{X(2)}
          v_lshlrev_b32 v{X(3)}, 4, v0
          v_and_b32 v{VGS}, 0x38, v0
          s_lshl_b32 s48, s44, 6
          v_add_u32 v{VSA}, s48, v{VGS}
          v_lshrrev_b32 v{VT+2}, 1, v2
          v_and_b32 v{VT}, 1, v2
          v_and_b32 v{VT+1}, 7, v3
          v_lshlrev_b32 v{X(4)}, 15, v{VT+2}
          v_lshl_add_u32 v{X(4)}, v{VT}, 8, v{X(4)}
          v_lshl_add_u32 v{X(4)}, v3, 4, v{X(4)}
          s_lshl_b32 s16, s64, 16
          s_lshl_b32 s48, s66, 9
          s_add_u32 s16, s16, s48
          s_add_u32 s16, s16, {W_O}
          s_add_u32 s26, s16, 0x4000
          v_lshrrev_b32 v{X(5)}, 3, v0
          v_lshlrev_b32 v{X(5)}, 9, v{X(5)}
          v_lshl_add_u32 v{X(5)}, v{VT+1}, 4, v{X(5)}
          s_lshl_b32 s17, s14, 14
          s_lshl_b32 s48, s44, 7
          s_add_u32 s17, s17, s48
          s_add_u32 s17, s17, {W_O}
          s_add_u32 s66, s17, 0x1000
          s_add_u32 s65, s17, 0x2000
          s_add_u32 s31, s17, 0x3000
          v_lshlrev_b32 v{X(6)}, 7, v1
          v_lshl_add_u32 v{X(6)}, v2, 3, v{X(6)}
          v_lshlrev_b32 v{X(7)}, 3, v{VT+2}
          v_lshlrev_b32 v{X(8)}, 8, v{VT+2}
          v_lshl_add_u32 v{X(8)}, v{VT}, 2, v{X(8)}
          v_and_b32 v4, 3, v0
          v_lshl_add_u32 v{X(8)}, v4, 4, v{X(8)}
          v_bfe_u32 v4, v0, 2, 1
          v_lshl_add_u32 v{X(8)}, v4, 3, v{X(8)}
          s_lshl_b32 s48, s44, 6
          v_add_u32 v{X(8)}, s48, v{X(8)}
          v_lshlrev_b32 v{X(9)}, 8, v1
          v_lshl_add_u32 v{X(9)}, v2, 4, v{X(9)}
          v_mul_u32_u24 v{X(11)}, 896, v{VT+2}
          v_lshl_add_u32 v{X(11)}, v3, 1, v{X(11)}
          s_mov_b32 s60, 0x00800100
          s_mov_b32 s61, 0x00800100
          v_lshl_add_u32 v{X(10)}, v{VT+2}, 3, v{VT}
          v_mul_u32_u24 v{X(10)}, {astr}, v{X(10)}
          v_cndmask_b32 v4, v{VT+1}, 8, s[60:61]
          v_lshl_add_u32 v{X(10)}, v4, 2, v{X(10)}
          v_lshlrev_b32 v{X(12)}, 2, v1
          v_mov_b32 v{X(13)}, 0xffffff00
          v_mov_b32 v{X(14)}, 1
          v_mul_u32_u24 v{X(15)}, {cs}, v0
          v_lshrrev_b32 v4, 2, v0
          v_lshlrev_b32 v5, 7, v4
          v_and_b32 v{VT}, 3, v0
          v_lshl_add_u32 v5, v{VT}, 3, v5
          v_bfe_u32 v4, v4, 1, 2
          v_xor_b32 v4, s44, v4
          v_lshl_add_u32 v5, v4, 5, v5
          s_lshl_b32 s18, s15, 3
          s_add_u32 s18, s18, s44
          s_mul_i32 s18, s18, {2*astr}
          s_add_u32 s18, s18, {W_A}
          s_lshl_b32 s19, s15, 7
          s_lshl_b32 s48, s44, 5
          s_add_u32 s19, s19, s48
          s_mov_b32 s20, s24
          s_mov_b32 s21, s25
          s_mov_b32 s22, 1792
          s_mov_b32 s23, 0x20000
          s_mul_i32 s48, s14, {cs}
          s_add_u32 s48, s48, {W_CNT + cs//2}
          s_add_u32 s24, s28, s48
          s_addc_u32 s25, s29, 0
          s_mul_i32 s30, s64, {4*cs}
          s_add_u32 s30, s30, {W_CNT + cs//2}
          s_branch L_pro1
          L_tch3:
          s_branch L_tback
          L_pro1:""")
    quad(0, 3)
    stamp(1)
    for n in range(1, NB):
        A(f"s_add_u32 s45, s38, {tconst(n)}")
        for k in range(4): quad(n, k)
    stamp(2)
    ldswait("L_qw", L_F, 1, VZ, VT)
    A(f"ds_read_b128 v[{VQ}:{VQ+3}], v{X(2)} offset:{L_Q}")
    A(f"ds_read_b128 v[{VQ+4}:{VQ+7}], v{X(2)} offset:{L_Q+256}")
    stamp(3)
    A("""s_add_u32 s67, s67, 0x01010101
         s_and_b32 s68, s67, 0xff
         s_bfe_u32 s69, s67, 0x80008
         s_bfe_u32 s70, s67, 0x80010
         s_lshr_b32 s71, s67, 24
         s_waitcnt lgkmcnt(0)""")
    C("---- K phase: 16 tiles of 16 keys; s46 = first tile of the trip, s49 = next tile to load")
    def qk_mfma(n, ks):
        b = buf(n)
        for kk in ks:
            A(f"v_mfma_f32_16x16x32_bf16 v[{VS+4*kk}:{VS+4*kk+3}], v[{b+8*kk}:{b+8*kk+3}], v[{VQ}:{VQ+3}], 0")
        for kk in ks:
            A(f"v_mfma_f32_16x16x32_bf16 v[{VS+4*kk}:{VS+4*kk+3}], v[{b+8*kk+4}:{b+8*kk+7}], v[{VQ+4}:{VQ+7}], v[{VS+4*kk}:{VS+4*kk+3}]")
    def qk_red(n):
        for kk in range(4): A(f"v_mov_b32_dpp v{VT+kk}, v{VS+4*kk} quad_perm:[0,0,0,0] {dppf}")
        for c in range(1, 4):
            for kk in range(4): A(f"v_add_f32_dpp v{VT+kk}, v{VS+4*kk+c}, v{VT+kk} quad_perm:[{c},{c},{c},{c}] {dppf}")
        A(f"""v_cvt_pk_bf16_f32 v{VT+4}, v{VT}, v{VT+1}
              v_cvt_pk_bf16_f32 v{VT+5}, v{VT+2}, v{VT+3}
              v_max3_f32 v{VM}, v{VM}, v{VT}, v{VT+1}
              ds_write_b64 v{VSA}, v[{VT+4}:{VT+5}] offset:{L_S + 256*n}
              v_max3_f32 v{VM}, v{VM}, v{VT+2}, v{VT+3}""")
    for n in range(NB):
        nn = (n + 1) % NB
        A(f"""L_k{n}:
              s_cmp_eq_u32 s46, 0
              s_cbranch_scc1 {f"L_kc{n}" if n else "L_ka0"}""")
        if n == NB - 1:
            A("""s_cmp_eq_u32 s46, 12
                 s_cbranch_scc1 L_ktov
                 L_kgo:""")
        dep("s45", "s38", "s49", TN, pos)
        A("s_add_u32 s49, s49, 1")
        quad(nn, 0); quad(nn, 1)
        if n == NB - 1: A("L_kc3:")
        quad(nn, 2)
        if ksplit:
            If = n < NB - 1
            if If: A(f"s_cmp_eq_u32 s46, 0\nL_ka{n}:")
            qk_mfma(n, range(4))
            if If: A(f"s_cbranch_scc1 L_kb{n}")
            quad(nn, 3)
            if If: A(f"L_kb{n}:")
            A("s_nop 3" if If else "s_nop 1")
        else:
            quad(nn, 3)
            A(f"L_ka{n}:")
            qk_mfma(n, range(4))
            A("s_nop 4")
        qk_red(n)
        if n == 1: A("s_branch L_k2\nL_tch4:\ns_branch L_tback")
    A(f"""v_add_u32 v{VSA}, {256*NB}, v{VSA}
          s_add_u32 s46, s46, {NB}
          s_cmp_lt_u32 s46, 16
          s_cbranch_scc1 L_k0""")
    C("---- K -> V: maximum over this wave's 256 keys, first scores")
    A(f"""s_mov_b64 exec, 1
          ds_add_u32 v{VZ}, v{X(14)} offset:{L_F+8}
          s_mov_b64 exec, -1
          v_subrev_u32 v{VSA}, {256*SV}, v{VSA}
          v_mov_b32 v{VT}, v{VM}
          ds_read_b64 v[{VSC}:{VSC+1}], v{VSA} offset:{L_S}
          s_mov_b32 s46, 1
          v_permlane16_swap_b32 v{VM}, v{VT}
          v_max_f32 v{VM}, v{VM}, v{VT}
          v_mov_b32 v{VT}, v{VM}
          s_nop 1
          v_permlane32_swap_b32 v{VM}, v{VT}
          v_max_f32 v{VM}, v{VM}, v{VT}
          v_cvt_pk_bf16_f32 v{VM}, v{VM}, v{VM}
          v_and_b32 v{VM}, 0xffff0000, v{VM}
          v_mul_f32 v{VMC}, s52, v{VM}""")
    stamp(10)
    A("s_branch L_v0")
    for n in (1, 2):
        A(f"L_kc{n}:")
        if n == 1: A(f"s_add_u32 s45, s38, {tconst(4)}\ns_mov_b32 s49, 5\ns_cmp_eq_u32 s46, 0")
        quad(0, n - 1)
        A(f"s_branch L_ka{n}")
    A(f"""L_ktov:
          s_mov_b32 s32, s36
          s_mov_b32 s33, s37
          s_mov_b32 s49, {PT}
          v_lshlrev_b32 v{VO}, 9, v2
          v_lshl_add_u32 v{VO}, v3, 4, v{VO}""")
    quads()
    A("s_branch L_kgo")
    page()
    A("L_tch5:\ns_branch L_tch6")
    if oddv is not None: oddc[0] = oddv
    def probs(sc):
        A(f"""v_lshlrev_b32 v{VT}, 16, v{sc}
              v_and_b32 v{VT+1}, 0xffff0000, v{sc}
              v_lshlrev_b32 v{VT+2}, 16, v{sc+1}
              v_and_b32 v{VT+3}, 0xffff0000, v{sc+1}""")
        for kk in range(4): A(f"v_fma_f32 v{VT+kk}, v{VT+kk}, s52, -v{VMC}")
        for kk in range(4): A(f"v_exp_f32 v{VT+kk}, v{VT+kk}")
        for kk in range(4): A(f"v_cvt_pk_bf16_f32 v{VT+kk}, v{VT+kk}, v{VT+kk}")
        for kk in range(4):
            for r in range(4): A(f"v_and_b32 v{VA+4*kk+r}, v{VT+kk}, v{VMASK+r}")
    def pv(n, ks=range(4)):
        b = buf(n)
        for kk in ks:
            for hf in range(2):
                A(f"v_mfma_f32_16x16x32_bf16 v[{VACC+4*hf}:{VACC+4*hf+3}], v[{VA+4*kk}:{VA+4*kk+3}], v[{b+8*kk+4*hf}:{b+8*kk+4*hf+3}], v[{VACC+4*hf}:{VACC+4*hf+3}]")
    C("---- V phase: s46 = tiles started, s53 = ticket, s57 = 1 when the tile being loaded is a half tile")
    for n in range(2):
        sc, scn = VSC + 2 * n, VSC + 2 * (1 - n)
        A(f"""L_v{n}:
              s_waitcnt lgkmcnt(0)
              s_cmp_lt_u32 s46, {SV}
              s_cbranch_scc0 L_vd{n}
              v_add_u32 v{VSA}, 256, v{VSA}""")
        dep("s45", "s38", "s49", TN, pos)
        A(f"""s_add_u32 s49, s49, 1
              ds_read_b64 v[{scn}:{scn+1}], v{VSA} offset:{L_S}""")
        quad(1 - n, 0); quad(1 - n, 1)
        A(f"""L_vb{n}:
              s_add_u32 s46, s46, 1
              s_cmp_lt_u32 s46, {SV}
              s_cbranch_scc1 L_noat{n}""")
        if n == SV % 2:
            A(f"""s_cmp_eq_u32 s46, {SV}
                  s_cbranch_scc1 L_norm
                  L_normx:""")
        A(f"""s_mov_b32 s53, 1
              s_atomic_add s53, s[50:51], 0 glc
              L_noat{n}:""")
        probs(sc)
        for _ in range(vpad): A(f"v_max_f32 v{VT+4}, v{VT+4}, v{VT+4}")
        if HT: A(f"s_cmp_eq_u32 s57, 1\ns_cbranch_scc1 L_vh{n}")
        A(f"""s_waitcnt vmcnt({WG + 1})
              s_cmp_le_u32 s46, {SV}
              s_cbranch_scc0 L_vc{n}
              s_waitcnt vmcnt({WG})
              L_vc{n}:""")
        quad(1 - n, 2, wait=False); quad(1 - n, 3)
        if n == (SV - tlate) % 2:
            A(f"""s_cmp_eq_u32 s46, {SV - tlate}
                  s_cbranch_scc0 L_vp{n}
                  ds_write_b32 v{VZ}, v{X(14)} offset:{L_F+20}""")
        A(f"L_vp{n}:")
        pv(n)
        if n == 1: A("s_branch L_v0")
    A("L_tch6:\ns_branch L_tch7")
    C("before the first ticket: switch the accumulators to the row's global log-sum-exp, fetch the GLU operands")
    A("L_norm:")
    ldswait("L_f2w", L_F, 2, VZ, VT + 7)
    A(f"ds_read_b32 v{VT+4}, v{X(12)} offset:{L_LS}")
    for k in range(4): A(f"ds_read_b64 v[{HR+4+2*k}:{HR+5+2*k}], v{X(6)} offset:{L_H + 32*k}")
    A(f"""ds_read_b64 v[{HR+2}:{HR+3}], v{X(7)} offset:{L_GT}
          s_waitcnt lgkmcnt(0)
          v_sub_f32 v{VT+5}, v{VMC}, v{VT+4}
          v_exp_f32 v{VT+5}, v{VT+5}
          v_mov_b32 v{VMC}, v{VT+4}
          v_mov_b32 v{VT+6}, v{VT+5}
          s_nop 1
          v_mov_b32_dpp v{VT+6}, v{VT+5} row_ror:8 row_mask:0x3 bank_mask:0xc
          s_nop 1
          v_mov_b32_dpp v{VT+6}, v{VT+5} row_ror:8 row_mask:0xc bank_mask:0x3""")
    for r in range(8): A(f"v_mul_f32 v{VACC+r}, v{VACC+r}, v{VT+6}")
    A("s_branch L_normx")
    for n in range(2):
        scn = VSC + 2 * (1 - n)
        A(f"""L_vd{n}:
              s_cmp_ge_u32 s53, {U + HT}
              s_cbranch_scc1 L_dry{n}""")
        if HT:
            assert U - HT >= 4
            A(f"""s_sub_u32 s56, s53, {U - HT}
                  s_cselect_b32 s56, 0, s56
                  s_cselect_b32 s57, 0, 1
                  s_add_u32 s54, s56, 1
                  s_lshr_b32 s54, s54, 1
                  s_sub_u32 s53, s53, s54
                  s_and_b32 s56, s56, 1""")
        A(f"""s_cmp_ge_u32 s53, {8*PT}
              s_cselect_b32 s55, {8*(8-PT)}, 0
              s_add_u32 s53, s53, s27
              s_add_u32 s53, s53, s55
              s_lshl_b32 s55, s53, 6
              s_add_u32 s55, s55, s58""")
        dep("s45", "s47", "s53", dorder, pos)
        if HT:
            A(f"""s_cmp_eq_u32 s57, 0
                  s_cbranch_scc1 L_vf{n}
                  s_lshl_b32 s54, s56, 2
                  s_add_u32 s55, s55, s54
                  s_lshl_b32 s54, s56, {pos['h']}
                  s_add_u32 s45, s45, s54
                  s_sub_u32 s45, s45, {1 << pos['h']}
                  v_mov_b32 v{scn}, 0xff80ff80
                  s_waitcnt vmcnt(4)
                  buffer_load_dword v{scn+1}, v{VGS}, s[40:43], s55 offen sc1""")
            ld(1 - n, 4); ld(1 - n, 5)
            A(f"""s_branch L_vb{n}
                  L_vh{n}:
                  s_waitcnt vmcnt(5)""")
            ld(1 - n, 6); ld(1 - n, 7)
            A(f"""s_waitcnt vmcnt(5)
                  s_branch L_vp{n}
                  L_vf{n}:""")
        A(f"""s_waitcnt vmcnt({WG})
              buffer_load_dwordx2 v[{scn}:{scn+1}], v{VGS}, s[40:43], s55 offen sc1""")
        quad(1 - n, 0, 1, wait=False); quad(1 - n, 1, 1)
        A(f"s_branch L_vb{n}")
    A("L_tch7:\ns_branch L_tch10")
    C("---- last tile of this wave")
    RD = [VT + 4, VT + 8, HR + 16, HR + 20, HR + 24, HR + 28]
    def rdpark():
        A(f"ds_read_b32 v{VT}, v{VZ} offset:{L_F+16}")
        for k in range(3):
            for hf in range(2):
                A(f"ds_read_b128 v[{RD[2*k+hf]}:{RD[2*k+hf]+3}], v{X(3)} offset:{L_P + 2048*k + 1024*hf}")
    def pk_add(d, a_, b_):
        for r in (0, 2): A(f"v_pk_add_f32 v[{d+r}:{d+r+1}], v[{a_+r}:{a_+r+1}], v[{b_+r}:{b_+r+1}]")
    def addpark():
        A("s_waitcnt lgkmcnt(2)")
        for hf in range(2): pk_add(RD[hf], RD[hf], RD[2+hf])
        A("s_waitcnt lgkmcnt(0)")
        for hf in range(2): pk_add(RD[hf], RD[hf], RD[4+hf])
        for hf in range(2): pk_add(VACC + 4*hf, VACC + 4*hf, RD[hf])
    k0 = (0, 1) if ms == 2 else ()
    k1 = (2,) if ms == 2 else (0, 1)
    k2 = (3,) if ms == 2 else (2, 3)
    for n in range(2):
        A(f"L_dry{n}:")
        if HT: A(f"""s_cmp_eq_u32 s57, 0
                     s_cbranch_scc1 L_dw{n}
                     s_waitcnt vmcnt(4)
                     L_dw{n}:""")
        A("s_waitcnt vmcnt(8)")
        probs(VSC + 2 * n)
        A(f"s_mov_b32 s59, {spin}\ns_waitcnt vmcnt(4)")
        pv(n, k0)
        C("arrival k at the last quad: waves 0..2 will park their partial in LDS slot k; wave 3 announces, adds them up and publishes")
        A(f"""s_mov_b64 exec, 1
              s_waitcnt vmcnt({ms})
              ds_add_rtn_u32 v{VT+1}, v{VZ}, v{X(14)} offset:{L_F+12}
              s_mov_b64 exec, -1""")
        pv(n, k1)
        rdpark()
        A(f"""s_waitcnt lgkmcnt(7)
              v_readfirstlane_b32 s54, v{VT+1}
              s_cmp_eq_u32 s54, 3
              s_cbranch_scc0 L_nr{n}
              s_mov_b64 exec, 15
              buffer_atomic_add v{X(14)}, v{X(15)}, s[40:43], s30 offen sc1
              s_mov_b64 exec, -1
              s_waitcnt lgkmcnt(6)
              v_cmp_gt_u32 vcc, 3, v{VT}
              s_cbranch_vccnz L_na{n}""")
        addpark()
        A(f"L_na{n}:\ns_waitcnt vmcnt(1)")
        stamp(4)
        A("s_nop 0")
        pv(n, k2)
        A(f"""s_cbranch_vccnz L_fin
              s_nop 4
              s_branch L_pub
              L_nr{n}:
              s_waitcnt vmcnt(0)""")
        stamp(4)
        pv(n, k2)
        if n == 0: A("s_branch L_park\nL_tch10:\ns_branch L_tch8")
    A(f"""L_park:
          s_nop 5
          s_lshl_b32 s54, s54, 11
          v_add_u32 v{VT+1}, s54, v{X(3)}
          ds_write_b128 v{VT+1}, v[{VACC}:{VACC+3}] offset:{L_P}
          ds_write_b128 v{VT+1}, v[{VACC+4}:{VACC+7}] offset:{L_P+1024}
          s_mov_b64 exec, 1
          ds_add_u32 v{VZ}, v{X(14)} offset:{L_F+16}
          s_mov_b64 exec, -1
          s_cmp_ge_u32 s2, 224
          s_cbranch_scc1 L_sdone""")
    C("the three early waves bring the 128 x 64 tile of wo and the rows of w_down to LDS, eight loads each")
    wd_k = 0 if word == 0 else 2
    A(f"""s_mov_b32 s55, s54
          s_cmp_eq_u32 s54, {wd_k << 11}
          s_cbranch_scc1 L_wd
          s_cmp_eq_u32 s54, {1 << 11}
          s_cselect_b32 s48, {4*896}, 0
          s_cselect_b32 s54, 8192, 0
          s_add_u32 s12, s12, s48
          s_add_u32 m0, s54, {L_WW}
          s_add_u32 s54, s54, {L_WW + 8192}
          L_wol:
          buffer_load_dwordx4 v{X(0)}, s[4:7], s12 offen nt lds
          s_add_u32 m0, m0, 1024
          s_add_u32 s12, s12, {16*896}
          s_cmp_lt_u32 m0, s54
          s_cbranch_scc1 L_wol
          s_branch L_wx
          L_wd:
          s_mov_b32 m0, {L_WD}
          s_nop 0
          L_wdl:
          buffer_load_dwordx4 v{X(1)}, s[8:11], s13 offen nt lds
          s_add_u32 m0, m0, 1024
          s_add_u32 s13, s13, {8*896}
          s_cmp_lt_u32 m0, {L_WD + 8192}
          s_cbranch_scc1 L_wdl
          L_wx:
          s_cmp_eq_u32 s55, {pk << 11}
          s_cbranch_scc1 L_bw0
          s_branch L_bwx
          L_tch8:
          s_branch L_tch9
          L_fin:""")
    rdpark()
    A(f"""s_sub_u32 s59, s59, 1
          s_cbranch_scc1 L_finx
          s_waitcnt lgkmcnt(6)
          v_cmp_gt_u32 vcc, 3, v{VT}
          s_cbranch_vccnz L_fin
          L_finx:""")
    addpark()
    A("L_pub:")
    for hf in range(2):
        for r in range(4): A(f"v_and_or_b32 v{VACC+4*hf+r}, v{VACC+4*hf+r}, v{X(13)}, s{68+r}")
        A(f"buffer_store_dwordx4 v[{VACC+4*hf}:{VACC+4*hf+3}], v{X(4)}, s[40:43], {'s26' if hf else 's16'} offen sc1")
    stamp(5)
    C("one wave waits until the 32 producers of this workgroup's row block have announced")
    A("s_cmp_ge_u32 s2, 224\ns_cbranch_scc1 L_sdone")
    if pk != 3: A("s_branch L_bwx")
    A("L_bw0:")
    if not bdep:
        A(f"""s_mov_b32 s59, {spin}
              L_bw:
              s_mov_b32 s54, 0
              s_atomic_add s54, s[24:25], 0 glc
              s_sub_u32 s59, s59, 1
              s_cbranch_scc1 L_bwx
              s_waitcnt lgkmcnt(0)
              s_cmp_lt_u32 s54, 32
              s_cbranch_scc1 L_bw""")
    else:
        BR = [12, 13, 39, 53][:bdep]
        for k, r in enumerate(BR):
            if k: A(f"s_sleep {bsl}")
            A(f"s_mov_b32 s{r}, -1\ns_atomic_and s{r}, s[24:25], 0 glc")
        A(f"s_mov_b32 s59, {spin*16}\nL_bw:")
        for r in BR:
            A(f"""s_add_u32 s48, s{r}, 1
                  s_cbranch_scc1 L_bn{r}
                  s_cmp_gt_u32 s48, 32
                  s_cbranch_scc1 L_bwx
                  s_mov_b32 s{r}, -1
                  s_atomic_and s{r}, s[24:25], 0 glc
                  L_bn{r}:""")
        A("s_sub_u32 s59, s59, 1\ns_cbranch_scc0 L_bw")
    A("L_bwx:\ns_barrier")
    stamp(6)
    G0 = buf(0)
    OA = buf(0) + 16
    DA = buf(1)
    DB = buf(1) + 8
    def gather():
        for k, so in enumerate(("s17", "s66", "s65", "s31")):
            A(f"buffer_load_dwordx4 v[{G0+4*k}:{G0+4*k+3}], v{X(5)}, s[40:43], {so} offen sc1")
    gather()
    A(f"""s_mov_b32 s59, {spin}
          s_mov_b32 s49, 0x41f80000
          s_waitcnt vmcnt(4)
          s_barrier""")
    stamp(11)
    C("wave v owns 16 of the 64 columns: transposed operands of all 128 + 56 rows, GLU product meanwhile")
    for k in range(4): A(f"ds_read_b64_tr_b16 v[{VW+16+2*k}:{VW+17+2*k}], v5 offset:{L_WD + 2048*k}")
    for k in range(4):
        for u in range(2): A(f"ds_read_b64_tr_b16 v[{VW+4*k+2*u}:{VW+4*k+2*u+1}], v5 offset:{L_WW + 4096*k + 2048*u}")
    A(f"""s_waitcnt lgkmcnt(8)
          v_mfma_f32_16x16x32_bf16 v[{DB}:{DB+3}], v[{HR+4}:{HR+7}], v[{VW+16}:{VW+19}], 0
          v_mfma_f32_16x16x32_bf16 v[{DB}:{DB+3}], v[{HR+8}:{HR+11}], v[{VW+20}:{VW+23}], v[{DB}:{DB+3}]
          s_branch L_p1c
          L_p1:
          s_mov_b64 exec, vcc""")
    gather()
    A("L_p1c:\ns_waitcnt vmcnt(0)")
    for k in range(16): A(f"v_xor_b32 v{G0+k}, s{68+(k&3)}, v{G0+k}")
    for k in range(4): A(f"v_or3_b32 v{VT+k}, v{G0+3*k}, v{G0+3*k+1}, v{G0+3*k+2}")
    A(f"""v_or3_b32 v{VT}, v{VT}, v{G0+12}, v{G0+13}
          v_or3_b32 v{VT+1}, v{VT+1}, v{G0+14}, v{G0+15}
          v_or3_b32 v{VT}, v{VT}, v{VT+2}, v{VT+3}
          v_bitop3_b32 v{VT}, v{VT}, v{VT+1}, v{X(13)} bitop3:0x54
          s_sub_u32 s59, s59, 1
          v_cmp_ne_u32 vcc, 0, v{VT}
          s_cbranch_scc1 L_p1ok
          s_cbranch_vccnz L_p1
          L_p1ok:
          s_mov_b64 exec, -1""")
    stamp(7)
    C("sum over the 16 splits: lanes 0..31 end with batch 0, 32..63 with batch 1; even rows elements 0,1 of a granule, odd rows 2,3")
    for o in (0, 8, 2, 10): A(f"v_pk_add_f32 v[{G0+o}:{G0+o+1}], v[{G0+o}:{G0+o+1}], v[{G0+o+4}:{G0+o+5}]")
    for r in range(4): A(f"v_permlane32_swap_b32 v{G0+r}, v{G0+8+r}")
    for r in (0, 2, 1, 3): A(f"v_add_f32 v{G0+r}, v{G0+r}, v{G0+8+r}")
    A(f"""v_permlane16_swap_b32 v{G0}, v{G0+2}
          v_mul_f32 v{DB}, v{DB}, v{HR+3}
          v_permlane16_swap_b32 v{G0+1}, v{G0+3}
          v_add_f32 v{G0}, v{G0}, v{G0+2}
          v_add_f32 v{G0+1}, v{G0+1}, v{G0+3}
          s_nop 0
          v_add_f32_dpp v{G0}, v{G0}, v{G0} row_ror:8 {dppf}
          v_add_f32_dpp v{G0+1}, v{G0+1}, v{G0+1} row_ror:8 {dppf}
          v_cvt_pk_bf16_f32 v{G0}, v{G0}, v{G0+1}
          ds_write_b32 v{X(8)}, v{G0} offset:{L_R}
          s_waitcnt lgkmcnt(0)
          s_barrier""")
    stamp(8)
    for k in range(4): A(f"ds_read_b128 v[{OA+4*k}:{OA+4*k+3}], v{X(9)} offset:{L_R + 64*k}")
    for k in range(4):
        d = DA + 4 * (k & 1)
        A(f"s_waitcnt lgkmcnt({3-k})")
        A(f"v_mfma_f32_16x16x32_bf16 v[{d}:{d+3}], v[{OA+4*k}:{OA+4*k+3}], v[{VW+4*k}:{VW+4*k+3}], {'0' if k < 2 else f'v[{d}:{d+3}]'}")
    C("each 64-byte segment takes 8 sums and one arrival count in a single returning add; the last of the 32 adders writes the output")
    A(f"""s_mov_b32 exec_lo, 0xff8001ff
          s_mov_b32 exec_hi, 0xff8001ff
          s_nop 4
          v_fmac_f32 v{DB}, v{HR+2}, v{DA}
          v_fmac_f32 v{DB}, v{HR+2}, v{DA+4}
          v_cndmask_b32 v22, v{DB}, 1.0, s[60:61]
          buffer_atomic_add_f32 v22, v{X(10)}, s[40:43], s18 offen sc0 sc1
          s_waitcnt vmcnt(0)""")
    stamp(9)
    A(f"""v_cmp_eq_f32 vcc, s49, v22
          v_add_f32 v20, v{DB}, v22
          s_bfe_i32 s56, vcc_lo, 0x10008
          s_bfe_i32 s57, vcc_lo, 0x10017
          s_bfe_i32 s62, vcc_hi, 0x10008
          s_bfe_i32 s63, vcc_hi, 0x10017
          v_cvt_pk_bf16_f32 v20, v20, v20
          s_pack_ll_b32_b16 s54, s56, s57
          s_pack_ll_b32_b16 s55, s62, s63
          s_and_b32 exec_lo, s54, 0xff0000ff
          s_and_b32 exec_hi, s55, 0xff0000ff
          s_cbranch_execz L_sdone
          buffer_store_short v20, v{X(11)}, s[20:23], s19 offen sc1
          s_cmp_eq_u32 s19, 0
          s_cbranch_scc0 L_sdone
          s_cmp_eq_u32 s56, 0
          s_cbranch_scc1 L_sdone
          s_mov_b64 exec, 1
          v_mov_b32 v20, s67
          buffer_store_dword v20, v{X(11)}, s[40:43], 0 offen sc1""")
    A("L_sdone:")
    dump(12)
    A("s_endpgm")

    page()
    A("L_tch1:\ns_branch L_tback")
    C("---- helper wave: s46 = tag of this launch, s50..s53 its bytes")
    A("L_helper:")
    instream[0] = False
    HX, HW, HD, HG = 16, 32, 88, 116
    A(f"""v_lshrrev_b32 v1, 2, v3
          v_lshl_add_u32 v1, v2, 2, v1
          v_lshlrev_b32 v8, 7, v1
          v_and_b32 v6, 3, v3
          v_lshl_add_u32 v8, v6, 3, v8
          v_bfe_u32 v1, v1, 1, 2
          v_lshlrev_b32 v1, 5, v1
          v_add_u32 v8, v8, v1
          v_xor_b32 v9, 32, v8
          v_xor_b32 v10, 64, v8
          v_xor_b32 v11, 0x60, v8
          v_and_b32 v14, 1, v3
          v_mul_u32_u24 v6, 896, v14
          v_lshl_add_u32 v6, v2, 3, v6
          v_bfe_u32 v7, v3, 1, 2
          v_lshl_add_u32 v7, v7, 2, v2
          v_lshlrev_b32 v7, 4, v7
          v_mov_b32 v15, 0xffffff00
          v_mov_b32 v30, 0
          v_and_b32 v1, 2, v3
          v_cmp_ne_u32 s[60:61], 0, v1
          v_and_b32 v1, 4, v3
          v_cmp_ne_u32 s[62:63], 0, v1
          s_lshl_b32 s57, s64, 13
          s_lshl_b32 s58, s31, 11
          s_add_u32 s57, s57, s58
          s_lshl_b32 s58, s30, 8
          s_add_u32 s57, s57, s58
          s_add_u32 s57, s57, {W_Q}
          s_mul_i32 s44, s31, 224
          v_add_u32 v1, s44, v6
          v_lshl_add_u32 v104, v14, 16, v7
          s_mov_b32 s47, 0
          s_waitcnt lgkmcnt(0)
          s_add_u32 s46, s46, 0x01010101
          s_and_b32 s50, s46, 0xff
          s_bfe_u32 s51, s46, 0x80008
          s_bfe_u32 s52, s46, 0x80010
          s_lshr_b32 s53, s46, 24
          s_waitcnt vmcnt(2)""")
    stamp(1)
    C("two trips: x times the wq tile, then x times a tile of w_gate or w_up; partial sums go out with the tag in the low byte")
    A("L_tile:")
    for k in range(7):
        A(f"ds_read_b64 v[{HX+2*k}:{HX+2*k+1}], v1 offset:{L_X + 32*k}")
        for ct in range(4):
            r = HW + 14 * ct + 2 * k
            A(f"ds_read_b64_tr_b16 v[{r}:{r+1}], v{8+ct} offset:{L_W + 2048*k}")
    A("s_waitcnt lgkmcnt(0)")
    for ct in range(4):
        r = HW + 14 * ct + 12
        A(f"v_mfma_f32_16x16x16_bf16 v[{HD+4*ct}:{HD+4*ct+3}], v[{r}:{r+1}], v[{HX+12}:{HX+13}], 0")
    A("s_nop 2")
    for k2 in range(3):
        for ct in range(4):
            r = HW + 14 * ct + 4 * k2
            A(f"v_mfma_f32_16x16x32_bf16 v[{HD+4*ct}:{HD+4*ct+3}], v[{r}:{r+3}], v[{HX+4*k2}:{HX+4*k2+3}], v[{HD+4*ct}:{HD+4*ct+3}]")
    A("s_nop 5")
    for r in range(4): A(f"v_cndmask_b32 v{HD+r}, v{HD+r}, v{HD+4+r}, s[60:61]")
    for r in range(4): A(f"v_cndmask_b32 v{HD+8+r}, v{HD+8+r}, v{HD+12+r}, s[60:61]")
    for r in range(4): A(f"v_cndmask_b32 v{HD+r}, v{HD+r}, v{HD+8+r}, s[62:63]")
    for r in range(4): A(f"v_and_or_b32 v{HD+r}, v{HD+r}, v15, s{50+r}")
    A(f"""s_mov_b32 exec_lo, 0x00ff00ff
          s_mov_b32 exec_hi, 0x00ff00ff
          buffer_store_dwordx4 v[{HD}:{HD+3}], v104, s[40:43], s57 offen sc1
          s_mov_b64 exec, -1
          s_cmp_eq_u32 s47, 1
          s_cbranch_scc1 L_tiledone""")
    stamp(2)
    C("zero what later atomics add to: ticket counters (splits 0..3), arrival counters (batch 0, splits 8..11), output segments (workgroups 32..38)")
    A(f"""s_waitcnt vmcnt(1)
          s_and_b32 s67, s2, 15
          s_lshr_b32 s56, s2, 4
          s_lshl_b32 s56, s56, 2
          s_and_b32 s57, s2, 3
          s_add_u32 s56, s56, s57
          s_mul_i32 s56, s56, {cs}
          s_add_u32 s56, s56, {W_CNT}
          s_cmp_lt_u32 s67, 4
          s_cbranch_scc1 L_z1
          s_add_u32 s56, s56, {cs//2}
          s_and_b32 s57, s2, 0x8c
          s_cmp_eq_u32 s57, 8
          s_cbranch_scc0 L_noz1
          L_z1:
          s_mov_b64 exec, 1
          buffer_store_dword v30, v30, s[40:43], s56 offen sc1
          s_mov_b64 exec, -1
          L_noz1:
          s_sub_u32 s44, s2, 32
          s_cmp_lt_u32 s44, 7
          s_cbranch_scc0 L_noz2
          v_lshrrev_b32 v1, 2, v0
          v_mul_u32_u24 v1, {astr}, v1
          v_and_b32 v31, 3, v0
          v_lshl_add_u32 v1, v31, 4, v1
          v_mov_b32 v32, 0
          v_mov_b32 v33, 0
          v_mov_b32 v34, 0
          v_mov_b32 v35, 0
          s_mul_i32 s56, s44, {16*astr}
          s_add_u32 s56, s56, {W_A}
          buffer_store_dwordx4 v[32:35], v1, s[40:43], s56 offen sc1
          L_noz2:
          s_cmp_ge_u32 s67, 14
          s_cbranch_scc1 L_gate
          s_lshr_b32 s45, s2, 4
          s_mul_i32 s45, s45, 14
          s_add_u32 s55, s67, s45
          s_mul_i32 s54, s55, 2341
          s_lshr_b32 s54, s54, 16
          s_mul_i32 s45, s54, 28
          s_sub_u32 s55, s55, s45
          s_and_b32 s56, s54, 3
          s_mul_i32 s48, s56, {112*3584}
          s_lshl_b32 s45, s55, 7
          s_add_u32 s48, s48, s45
          v_mul_u32_u24 v4, 3584, v13
          v_add_u32 v4, v4, v12
          s_cmp_ge_u32 s54, 4
          s_cselect_b32 s36, s18, s16
          s_cselect_b32 s37, s19, s17
          s_mov_b32 s38, 1605632""")
    assert all((i * 2341) >> 16 == i // 28 for i in range(224))
    tile_dma("L_gdma", 3584)
    A("s_branch L_gate\nL_tch2:\ns_branch L_tback")
    C("mixing gate g = sigmoid(sum(x * gate_w)) with the reference's roundings")
    A(f"""L_gate:
          v_lshrrev_b32 v1, 5, v0
          v_mul_u32_u24 v1, 896, v1
          v_add_u32 v1, v1, v107
          ds_read_b128 v[40:43], v1 offset:{L_X}
          ds_read_b128 v[44:47], v1 offset:{L_X+16}
          v_mov_b32 v{HG}, 0
          s_mov_b32 exec_lo, 0x0fffffff
          s_mov_b32 exec_hi, 0x0fffffff
          s_waitcnt lgkmcnt(0)""")
    for k in range(8):
        A(f"""v_lshlrev_b32 v48, 16, v{108+k}
              v_and_b32 v49, 0xffff0000, v{108+k}
              v_lshlrev_b32 v50, 16, v{40+k}
              v_and_b32 v51, 0xffff0000, v{40+k}
              v_mul_f32 v48, v48, v50
              v_mul_f32 v49, v49, v51
              v_cvt_pk_bf16_f32 v48, v48, v49
              v_lshlrev_b32 v49, 16, v48
              v_and_b32 v48, 0xffff0000, v48
              v_add_f32 v{HG}, v{HG}, v49
              v_add_f32 v{HG}, v{HG}, v48""")
    A("s_mov_b64 exec, -1")
    for d in red + ("row_mirror",):
        A(f"s_nop 1\nv_add_f32_dpp v{HG}, v{HG}, v{HG} {d} {dppf}")
    A(f"""v_mov_b32 v48, v{HG}
          s_nop 1
          v_permlane16_swap_b32 v{HG}, v48
          v_add_f32 v{HG}, v{HG}, v48
          v_cvt_pk_bf16_f32 v{HG}, v{HG}, v{HG}
          v_and_b32 v{HG}, 0xffff0000, v{HG}
          v_mul_f32 v{HG}, 0x{f2u(-LOG2E):08x}, v{HG}
          v_exp_f32 v{HG}, v{HG}
          s_nop 0
          v_add_f32 v{HG}, 1.0, v{HG}
          v_rcp_f32 v{HG}, v{HG}
          s_nop 0
          v_cvt_pk_bf16_f32 v{HG}, v{HG}, v{HG}
          v_and_b32 v{HG}, 0xffff0000, v{HG}
          v_sub_f32 v{HG+1}, 1.0, v{HG}
          v_cvt_pk_bf16_f32 v{HG+1}, v{HG+1}, v{HG+1}
          v_and_b32 v{HG+1}, 0xffff0000, v{HG+1}
          v_lshrrev_b32 v1, 2, v0
          s_mov_b32 exec_lo, 1
          s_mov_b32 exec_hi, 1
          ds_write_b64 v1, v[{HG}:{HG+1}] offset:{L_GT}
          s_mov_b64 exec, -1
          s_waitcnt vmcnt(0)
          s_cmp_ge_u32 s67, 14
          s_cbranch_scc1 L_tiledone
          s_mov_b32 s47, 1
          s_mul_i32 s57, s54, {2*7168}
          s_lshl_b32 s44, s55, 8
          s_add_u32 s57, s57, s44
          s_add_u32 s57, s57, {W_G}
          s_mul_i32 s44, s56, 224
          v_add_u32 v1, s44, v6
          v_mul_u32_u24 v104, 7168, v14
          v_add_u32 v104, v104, v7
          s_branch L_tile""")
    C("gather the four partial sums of q for this (batch, kv head)")
    A("L_tiledone:")
    stamp(4)
    def untag(base, n):
        for k in range(n):
            for r in range(4): A(f"v_xor_b32 v{base+4*k+r}, s{50+r}, v{base+4*k+r}")
        regs = [base + i for i in range(4 * n)]
        A(f"v_or3_b32 v1, v{regs[0]}, v{regs[1]}, v{regs[2]}")
        i = 3
        while i < len(regs):
            if i + 1 < len(regs): A(f"v_or3_b32 v1, v1, v{regs[i]}, v{regs[i+1]}"); i += 2
            else: A(f"v_or_b32 v1, v1, v{regs[i]}"); i += 1
        A("v_and_b32 v1, 0xff, v1")
    A(f"""s_lshr_b32 s58, s2, 4
          s_lshl_b32 s58, s58, 13
          s_add_u32 s58, s58, {W_Q}
          v_add_u32 v105, 0x1000, v5
          s_mov_b32 s59, {spin}
          L_qpoll:""")
    for rb in range(4):
        for hf in range(2):
            o = rb * 2048 + hf * 1024
            A(f"buffer_load_dwordx4 v[{32+8*rb+4*hf}:{35+8*rb+4*hf}], {'v5' if o < 4096 else 'v105'}, s[40:43], s58 offen offset:{o & 4095} sc1")
    A("s_waitcnt vmcnt(0)")
    untag(32, 8)
    A("""v_cmp_ne_u32 vcc, 0, v1
         s_sub_u32 s59, s59, 1
         s_cbranch_scc1 L_qok
         s_cbranch_vccz L_qok
         s_mov_b64 exec, vcc
         s_branch L_qpoll
         L_qok:
         s_mov_b64 exec, -1""")
    for r in range(8): A(f"v_add_f32 v{32+r}, v{32+r}, v{40+r}")
    for r in range(8): A(f"v_add_f32 v{48+r}, v{48+r}, v{56+r}")
    for r in range(8): A(f"v_add_f32 v{32+r}, v{32+r}, v{48+r}")
    for r in range(4): A(f"v_cvt_pk_bf16_f32 v{32+r}, v{32+2*r}, v{33+2*r}")
    A(f"""v_lshlrev_b32 v1, 3, v0
          v_mov_b32 v37, 1
          ds_write_b64 v1, v[32:33] offset:{L_Q}
          ds_write_b64 v1, v[34:35] offset:{L_Q+512}
          s_waitcnt lgkmcnt(0)
          ds_write_b32 v30, v37 offset:{L_F}""")
    stamp(3)
    A("s_branch L_tch5\nL_tch9:")
    C("after the K phase: export the scores of the shared tiles, publish max-shifted log-sum-exp of the 1024 keys")
    SP = {n: 6 + i for i, n in enumerate(dorder)}
    A(f"""s_lshr_b32 s45, s2, 4
          s_lshl_b32 s45, s45, 15
          s_add_u32 s45, s45, {W_S}""")
    dep("s45", "s45", "s2", ["x0", "x1", "x2", "p"], SP)
    A("v_and_b32 v4, 3, v0\nv_lshlrev_b32 v4, 4, v4")
    for i, nm in enumerate(["w0", "w1", "t0", "t1"]):
        A(f"v_bfe_u32 v1, v0, {2+i}, 1\nv_lshl_add_u32 v4, v1, {SP[nm]}, v4")
    ldswait("L_kw", L_F + 8, 4, 30, 31, sleep=16)
    for k in range(4): A(f"ds_read_b128 v[{80+4*k}:{83+4*k}], v5 offset:{L_S + 1024*k}")
    nl = PT * 16
    A(f"""s_mov_b32 s47, 0x{f2u(LOG2E/16):08x}
          s_mov_b32 exec_lo, 0x{(1 << min(nl, 32)) - 1:x}
          s_mov_b32 exec_hi, 0x{(1 << max(nl - 32, 0)) - 1:x}
          s_waitcnt lgkmcnt(0)
          {"s_nop 0" if xe else "buffer_store_dwordx4 v[80:83], v4, s[40:43], s45 offen sc1"}
          s_mov_b64 exec, -1""")
    for k in range(4):
        for d in range(4):
            h, o = d >> 1, 4 * k + 2 * (d & 1)
            A(f"v_lshlrev_b32 v{48+16*h+o}, 16, v{80+4*k+d}")
            A(f"v_and_b32 v{48+16*h+o+1}, 0xffff0000, v{80+4*k+d}")
    def allred(op, regs, full=True):
        for d in red + ("row_mirror",):
            A("s_nop 0")
            for r in regs: A(f"{op}_dpp v{r}, v{r}, v{r} {d} {dppf}")
        if full:
            for sw in ("v_permlane16_swap_b32", "v_permlane32_swap_b32"):
                for r in regs: A(f"v_mov_b32 v{r+2}, v{r}")
                A("s_nop 1")
                for r in regs: A(f"{sw} v{r}, v{r+2}")
                for r in regs: A(f"{op} v{r}, v{r}, v{r+2}")
    for h in range(2):
        b = 48 + 16 * h
        A(f"v_max3_f32 v{32+h}, v{b}, v{b+1}, v{b+2}")
        for i in range(3, 15, 2): A(f"v_max3_f32 v{32+h}, v{32+h}, v{b+i}, v{b+i+1}")
        A(f"v_max_f32 v{32+h}, v{32+h}, v{b+15}")
    allred("v_max_f32", [32, 33])
    for h in range(2): A(f"v_mul_f32 v{32+h}, s47, v{32+h}")
    for i in range(32): A(f"v_fma_f32 v{48+i}, v{48+i}, s47, -v{32+(i>>4)}")
    for i in range(32): A(f"v_exp_f32 v{48+i}, v{48+i}")
    for h in range(2): A(f"v_add_f32 v{36+h}, v{48+16*h}, v{49+16*h}")
    for i in range(2, 16):
        for h in range(2): A(f"v_add_f32 v{36+h}, v{36+h}, v{48+16*h+i}")
    allred("v_add_f32", [36, 37])
    A(f"""v_log_f32 v36, v36
          v_log_f32 v37, v37
          v_mov_b32 v35, s46
          v_add_f32 v32, v32, v36
          v_add_f32 v34, v33, v37
          v_mov_b32 v33, s46
          s_lshl_b32 s44, s2, 4
          s_add_u32 s44, s44, {W_T}
          s_mov_b64 exec, 1
          s_waitcnt vmcnt(0)
          buffer_store_dwordx4 v[32:35], v5, s[40:43], s44 offen sc1
          s_mov_b64 exec, -1
          s_and_b32 s44, s44, 0xfffff700
          s_lshr_b32 s45, s2, 7
          v_xor_b32 v6, s45, v2
          v_and_b32 v6, 1, v6
          v_lshlrev_b32 v6, 11, v6
          v_lshl_add_u32 v6, v3, 4, v6
          v_and_b32 v1, 3, v0
          v_lshlrev_b32 v1, 1, v1
          v_bfe_u32 v14, v0, 2, 1
          v_add_u32 v1, v1, v14
          v_mul_u32_u24 v4, 7168, v1
          v_lshl_add_u32 v4, v13, 4, v4
          v_add_u32 v7, 128, v4""")
    consumer("s54", "s55")
    A(f"""s_mul_i32 s45, s54, 224
          s_lshl_b32 s47, s55, 8
          s_add_u32 s47, s47, {2*7168}
          s_sub_u32 s47, s47, s45
          s_mov_b32 exec_lo, 0
          s_mov_b32 exec_hi, 0xffff0000
          v_mov_b32 v7, s47
          s_mov_b64 exec, -1
          s_add_u32 s45, s45, {W_G}
          s_add_u32 s47, s45, {8*7168}""")
    stamp(7)
    C("late in the V phase: statistics of the kv head's 32 workgroups (rows alternate own / other batch), gate/up partials of 56 hidden units;")
    C("spare lanes look at the record of the workgroup that zeroed this column block's output segments")
    ldswait("L_tw", L_F + 20, 1, 30, 31, sleep=16)
    A(f"""s_mov_b32 s59, {spin}
          s_branch L_lp1
          L_lp:
          s_sleep 16
          L_lp1:
          buffer_load_dwordx4 v[40:43], v6, s[40:43], s44 offen sc1
          buffer_load_dwordx4 v[64:67], v4, s[40:43], s45 offen sc1
          buffer_load_dwordx4 v[68:71], v7, s[40:43], s45 offen sc1
          buffer_load_dwordx4 v[72:75], v4, s[40:43], s47 offen sc1
          buffer_load_dwordx4 v[76:79], v7, s[40:43], s47 offen sc1
          s_waitcnt vmcnt(0)""")
    untag(64, 4)
    A("""v_xor_b32 v41, s46, v41
         v_xor_b32 v43, s46, v43
         v_or3_b32 v1, v1, v41, v43
         s_sub_u32 s59, s59, 1
         v_cmp_ne_u32 vcc, 0, v1
         s_cbranch_scc1 L_lpok
         s_cbranch_vccnz L_lp
         L_lpok:""")
    stamp(8)
    for d in red[:2]:
        for r in range(16): A(f"v_add_f32_dpp v{64+r}, v{64+r}, v{64+r} {d} {dppf}")
    for r in range(8): A(f"v_cvt_pk_bf16_f32 v{72+r}, v{64+r}, v{72+r}")
    for r in range(8): A(f"v_lshlrev_b32 v{64+r}, 16, v{72+r}")
    for r in range(8): A(f"v_and_b32 v{72+r}, 0xffff0000, v{72+r}")
    for r in range(8): A(f"v_mul_f32 v{64+r}, 0x{f2u(-LOG2E):08x}, v{64+r}")
    for r in range(8): A(f"v_exp_f32 v{64+r}, v{64+r}")
    for r in range(8): A(f"v_add_f32 v{64+r}, 1.0, v{64+r}")
    for r in range(8): A(f"v_rcp_f32 v{64+r}, v{64+r}")
    for r in range(8): A(f"v_cvt_pk_bf16_f32 v{64+r}, v{64+r}, v{64+r}")
    for r in range(8): A(f"v_and_b32 v{64+r}, 0xffff0000, v{64+r}")
    for r in range(8): A(f"v_mul_f32 v{64+r}, v{64+r}, v{72+r}")
    for r in range(4): A(f"v_cvt_pk_bf16_f32 v{64+r}, v{64+2*r}, v{65+2*r}")
    A(f"""v_lshlrev_b32 v1, 7, v14
          v_lshl_add_u32 v1, v13, 3, v1
          s_mov_b32 exec_lo, 0
          s_mov_b32 exec_hi, 0xffff0000
          v_mov_b32 v66, 0
          v_mov_b32 v67, 0
          s_mov_b32 exec_lo, 0x11111111
          s_mov_b32 exec_hi, 0x11111111
          ds_write_b64 v1, v[64:65] offset:{L_H}
          ds_write_b64 v1, v[66:67] offset:{L_H+64}
          s_mov_b64 exec, -1
          v_mov_b32 v48, v40
          v_mov_b32 v49, v42""")
    allred("v_max_f32", [48, 49], full=False)
    A("""v_sub_f32 v36, v40, v48
         v_sub_f32 v37, v42, v49
         v_exp_f32 v36, v36
         v_exp_f32 v37, v37
         s_nop 0""")
    allred("v_add_f32", [36, 37], full=False)
    A(f"""v_log_f32 v36, v36
          v_log_f32 v37, v37
          v_mov_b32 v50, 2
          v_add_f32 v48, v48, v36
          v_add_f32 v49, v49, v37
          s_mov_b64 exec, 1
          ds_write_b64 v30, v[48:49] offset:{L_LS}
          s_waitcnt lgkmcnt(0)
          ds_write_b32 v30, v50 offset:{L_F}
          s_waitcnt lgkmcnt(0)""")
    stamp(9)
    dump(10)
    A("L_end:")
    A("s_endpgm")
    L.append('.section .rodata,"a"')
    L.append(".p2align 6")
    L.append(f".amdhsa_kernel {KNAME}")
    L.append("""  .amdhsa_next_free_vgpr 212
  .amdhsa_next_free_sgpr 102
  .amdhsa_accum_offset 212
  .amdhsa_group_segment_fixed_size 0
  .amdhsa_kernarg_size 104
  .amdhsa_user_sgpr_count 2
  .amdhsa_user_sgpr_kernarg_segment_ptr 1
  .amdhsa_system_sgpr_workgroup_id_x 1
.end_amdhsa_kernel""")
    return "\n".join(L) + "\n"

if __name__ == "__main__":
    kw = json.loads(sys.argv[1]) if len(sys.argv) > 1 else {}
    sys.stdout.write(gen(**kw))
```

```python
import sys, json, struct
KNAME = "gated_mix__gqa_block_cached__glu_gated_glu__decode_kernel"

HEADER = """; Kernarg layout for this problem (104 bytes, ptrs only, base s[0:1]):
;   offset   0: d_in[0] A_x  shape=(2, 1, 448) dtype=bfloat16
;   offset   8: d_in[1] A_k_cache  shape=(2, 8, 16384, 256) dtype=bfloat16
;   offset  16: d_in[2] A_v_cache  shape=(2, 8, 16384, 256) dtype=bfloat16
;   offset  24: d_in[3] A_wq  shape=(448, 4096) dtype=bfloat16
;   offset  32: d_in[4] A_wo  shape=(4096, 448) dtype=bfloat16
"""

W_CNT   = 0x70000
W_Q     = 0x8000
W_G     = 0x30000
W_A     = 0x50000
W_T     = 0x61000
W_O     = 0x80000
W_S     = 0x100000
W_DBG   = 0x400000
W_SIZE  = 0x800000

L_X   = 0
L_W   = 2048
L_Q   = 16384
L_F   = 17408
L_GT  = 17536
L_LS  = 17600
L_H   = 17664
L_P   = 18432
L_R   = 26624
L_S   = 30720
L_WW  = 34816
LDS_SIZE = 59392

NH, NS = 10, 12
LOG2E = 1.4426950408889634
def f2u(x): return struct.unpack("<I", struct.pack("<f", x))[0]
dppf = "row_mask:0xf bank_mask:0xf"
red = ("quad_perm:[1,0,3,2]", "quad_perm:[2,3,0,1]", "row_half_mirror")

def gen(order="q w0 w1 h p t0 t1 t2 x0 x1 x2 t3", PT=3, HT=8, odd="37", tlate=4, dbg=0, spin=200000, ksplit=0, astr=128, cmt=0, oddv=None, xe=0, vpad=0, ptouch=0, cs=512, one=1, rmap=1):
    oddc = [odd]
    NB, WG = 4, 4
    pos = {n: 11 + i for i, n in enumerate(order.split())}
    dorder = [n for n in order.split() if n not in ('q', 'h', 't3')]
    assert dorder[3:6] == ['t0', 't1', 't2'] and PT <= 4
    U = PT * 16
    SV = 16 - PT
    L = []
    def A(s):
        for line in s.split("\n"):
            line = line.strip()
            if line: L.append(("" if line.endswith(":") else "    ") + line)
    def C(s): L.append("; " + s)
    instream = [False]
    def stamp(k):
        if dbg == 4 and (k not in (0, 4, 9) or (k and not instream[0])): return
        if dbg: A(f"s_memrealtime s[{72+2*k}:{73+2*k}]")
    def dump(n):
        if not dbg: return
        A("s_waitcnt lgkmcnt(0)")
        A("s_mul_i32 s60, s2, 5\ns_add_u32 s60, s60, s3\ns_lshl_b32 s60, s60, 6")
        A(f"s_add_u32 s60, s60, {W_DBG}\ns_mov_b64 exec, 1\nv_mov_b32 v1, 0")
        for k in range(n):
            A(f"v_mov_b32 v2, s{72+2*k}\nbuffer_store_dword v2, v1, s[40:43], s60 offen offset:{4*k}")
        A("s_getreg_b32 s61, hwreg(HW_REG_XCC_ID)\nv_mov_b32 v2, s61\nbuffer_store_dword v2, v1, s[40:43], s60 offen offset:60")
        A("v_mov_b32 v2, s46\nbuffer_store_dword v2, v1, s[40:43], s60 offen offset:56")
    def dep(dst, base, src, names, P, tmp="s48"):
        i = 0
        while i < len(names):
            j = i
            while j + 1 < len(names) and P[names[j + 1]] == P[names[j]] + 1: j += 1
            A(f"s_bfe_u32 {tmp}, {src}, 0x{((j - i + 1) << 16) | i:x}")
            A(f"s_lshl_b32 {tmp}, {tmp}, {P[names[i]]}")
            A(f"s_add_u32 {dst}, {base}, {tmp}")
            base = dst; i = j + 1
    TN = ["t0", "t1", "t2", "t3"]
    def tconst(t): return sum(((t >> i) & 1) << pos[TN[i]] for i in range(4))
    def ldswait(lab, off, val, vz, vt, sleep=0):
        A(f"s_mov_b32 s59, {spin*8}\n{lab}:")
        if sleep: A(f"s_sleep {sleep}")
        A(f"""ds_read_b32 v{vt}, v{vz} offset:{off}
              s_sub_u32 s59, s59, 1
              s_cbranch_scc1 {lab}x
              s_waitcnt lgkmcnt(0)
              v_cmp_gt_u32 vcc, {val}, v{vt}
              s_cbranch_vccnz {lab}
              {lab}x:""")
    def consumer(sR, sC):
        A(f"""s_lshr_b32 {sC}, s2, 3
              s_min_u32 {sC}, {sC}, 27
              s_mul_i32 {sR}, {sC}, 37
              s_lshr_b32 {sR}, {sR}, 8
              s_mul_i32 s48, {sR}, 7
              s_sub_u32 {sC}, {sC}, s48
              s_and_b32 s48, s2, 7""")
        if rmap == 0: A(f"s_lshl_b32 {sR}, {sR}, 3")
        else: A("s_lshl_b32 s48, s48, 2")
        A(f"s_add_u32 {sR}, {sR}, s48")
    assert all((k * 37) >> 8 == k // 7 for k in range(28))
    def page(): L.append(f".fill ((({KNAME} - .) & 4095) >> 2), 4, 0xbf810000")

    L.append(HEADER.rstrip())
    L.append(f"; @launch grid=(256,1,1) block=(320,1,1) lds={LDS_SIZE}")
    L.append('.amdgcn_target "amdgcn-amd-amdhsa--gfx950"')
    L.append(".text")
    L.append(f".globl {KNAME}")
    L.append(".p2align 12")
    L.append(f".fill {(4096-768)//4}, 4, 0xbf810000")
    L.append(".p2align 8")
    L.append(f".type {KNAME},@function")
    L.append(f"{KNAME}:")
    C("---- entry: v0 lane, v2 = lane>>4, v3 = lane&15, s3 wave; s30 = wg&7, s31 = b*2 + (wg>>3&1), s64 kv head, s65 = s64*8+s30, s66 = b*16 + split")
    A("s_cmp_ge_u32 s2, 256")
    A("s_cbranch_scc1 L_end")
    stamp(0)
    if dbg:
        for k in range(1, 12): A(f"s_mov_b32 s{72+2*k}, 0")
    A(f"""s_load_dwordx16 s[4:19], s[0:1], 0
          s_load_dwordx8 s[20:27], s[0:1], 64
          s_load_dwordx2 s[28:29], s[0:1], 96
          v_lshrrev_b32 v1, 6, v0
          v_and_b32 v0, 63, v0
          v_readfirstlane_b32 s3, v1
          v_lshrrev_b32 v2, 4, v0
          v_and_b32 v3, 15, v0
          s_mov_b32 s35, 0x20000
          s_mov_b32 s39, 0x20000
          s_mov_b32 s43, 0x20000
          s_mov_b32 s42, {W_SIZE}
          s_and_b32 s30, s2, 7
          s_lshr_b32 s31, s2, 7
          s_lshl_b32 s66, s31, 4
          s_lshl_b32 s31, s31, 1
          s_bfe_u32 s64, s2, 0x10003
          s_add_u32 s31, s31, s64
          s_and_b32 s64, s2, 15
          s_add_u32 s66, s66, s64
          s_bfe_u32 s64, s2, 0x30004
          s_lshl_b32 s65, s64, 3
          s_add_u32 s65, s65, s30
          s_cmp_eq_u32 s3, 0
          s_cbranch_scc0 L_stream""")
    C("---- helper wave, first part: x and a 112 x 64 tile of wq to LDS, gate_w to registers")
    A(f"""v_mov_b32 v1, 0
          v_lshlrev_b32 v4, 2, v3
          v_lshrrev_b32 v13, 3, v0
          ds_write_b32 v4, v1 offset:{L_F}
          v_and_b32 v12, 6, v13
          v_xor_b32 v12, v12, v0
          v_and_b32 v12, 7, v12
          v_lshlrev_b32 v12, 4, v12
          v_lshl_add_u32 v4, v13, 13, v12
          v_lshlrev_b32 v5, 4, v0
          v_and_b32 v107, 31, v0
          v_lshlrev_b32 v107, 5, v107
          s_mul_i32 s48, s31, {112*8192}
          s_lshl_b32 s44, s65, 7
          s_add_u32 s48, s48, s44
          s_mov_b32 s34, 1792
          s_mov_b32 s38, 3670016
          s_mov_b32 s70, 896
          s_mov_b32 s71, 0x20000
          s_mov_b32 m0, {L_X}
          s_waitcnt lgkmcnt(0)
          s_mov_b32 s36, s10
          s_mov_b32 s37, s11
          s_mov_b32 s32, s4
          s_mov_b32 s33, s5
          s_mov_b32 s68, s22
          s_mov_b32 s69, s23
          buffer_load_dwordx4 v5, s[32:35], 0 offen lds
          buffer_load_dwordx4 v5, s[32:35], 0 offen offset:1024 lds""")
    def tile_dma(lab, rowb):
        A(f"""s_mov_b32 m0, {L_W}
              s_nop 0
              {lab}:
              buffer_load_dwordx4 v4, s[36:39], s48 offen nt lds
              s_add_u32 m0, m0, 1024
              s_add_u32 s48, s48, {8*rowb}
              s_cmp_lt_u32 m0, {L_W + 14*1024}
              s_cbranch_scc1 {lab}""")
    tile_dma("L_qdma", 8192)
    A("""buffer_load_dwordx4 v[108:111], v107, s[68:71], 0 offen
         buffer_load_dwordx4 v[112:115], v107, s[68:71], 0 offen offset:16
         s_barrier
         s_load_dword s46, s[28:29], 0
         s_mov_b32 s40, s28
         s_mov_b32 s41, s29
         s_branch L_helper""")

    VZ, VSA, VQ, VMASK, VACC = 6, 7, 8, 16, 20
    VM, VMC, VGS = 28, 29, 30
    VS = VA = 32
    VT = 48
    VSC = 60
    VB = 64
    VW = VB + 64
    HR = VB + 96
    VX = 192
    VO = 208
    X = lambda k: VX + k
    def buf(n): return VB + 32 * n
    C("---- streaming waves: s44 = wave-1, s47 group base, s38 own base, s45 tile offset")
    A("L_stream:")
    instream[0] = True
    A(f"""v_lshrrev_b32 v{VO}, 2, v3
          v_lshlrev_b32 v{VO}, 9, v{VO}
          v_lshl_add_u32 v{VO}, v2, 6, v{VO}
          v_and_b32 v6, 3, v3
          v_lshl_add_u32 v{VO}, v6, 4, v{VO}
          s_sub_u32 s44, s3, 1
          s_lshr_b32 s47, s2, 4
          s_lshl_b32 s47, s47, 23
          s_mov_b32 s34, 0x8000000""")
    def quads():
        A(f"""v_add_u32 v{VO+1}, {1 << pos['q']}, v{VO}
              v_add_u32 v{VO+2}, {1 << pos['h']}, v{VO}
              v_add_u32 v{VO+3}, {(1 << pos['h']) + (1 << pos['q'])}, v{VO}""")
    quads()
    dep("s45", "s47", "s2", ["x0", "x1", "x2", "p"], pos)
    dep("s45", "s45", "s44", ["w0", "w1"], pos)
    C("each wave branches through one later code line while the kernel arguments are in flight (instruction prefetch)")
    A("""s_cmp_eq_u32 s3, 1
         s_cbranch_scc1 L_tch1
         s_cmp_eq_u32 s3, 2
         s_cbranch_scc1 L_tch2
         s_cmp_eq_u32 s3, 3
         s_cbranch_scc1 L_tch3
         s_branch L_tch4
         L_tback:
         s_waitcnt lgkmcnt(0)
         s_mov_b32 s32, s6
         s_mov_b32 s33, s7
         s_barrier""")
    def ld(n, m): A(f"buffer_load_dwordx4 v[{buf(n)+4*m}:{buf(n)+4*m+3}], v{VO + (m >> 1)}, s[32:35], s45 offen offset:{256*(m & 1)} nt")
    def quad(n, k, extra=0, wait=True):
        for m in (2 * k, 2 * k + 1):
            if (m % 2 == 0 and wait) or str(m) in oddc[0]: A(f"s_waitcnt vmcnt({WG + (extra if m <= WG else 0)})")
            ld(n, m)
    for m in range(6): ld(0, m)
    C("constants: s[36:37] V, s[4:7] wo, s[8:11] w_down, s12/s13 their offsets, s[14:15] lane mask, s[50:51] ticket counter, s[24:25] arrival counter")
    A(f"""s_mov_b32 s38, s45
          s_load_dword s67, s[28:29], 0
          s_mov_b32 s36, s8
          s_mov_b32 s37, s9
          s_mov_b32 s40, s28
          s_mov_b32 s41, s29
          s_lshr_b32 s58, s2, 4
          s_lshl_b32 s48, s58, 2
          s_lshl_b32 s58, s58, 15
          s_add_u32 s58, s58, {W_S}
          s_lshr_b32 s27, s2, 1
          s_add_u32 s27, s44, s27
          s_and_b32 s27, s27, 3
          s_add_u32 s48, s48, s27
          s_lshl_b32 s27, s27, 7
          s_mul_i32 s48, s48, {cs}
          s_add_u32 s48, s48, {W_CNT}
          s_add_u32 s50, s28, s48
          s_addc_u32 s51, s29, 0
          s_mov_b32 s46, 0
          s_mov_b32 s52, 0x{f2u(LOG2E/16):08x}
          s_mov_b32 s53, 0
          s_mov_b32 s57, 0
          s_mov_b32 s4, s12
          s_mov_b32 s5, s13
          s_mov_b32 s6, 3670016
          s_mov_b32 s7, 0x20000
          s_mov_b32 s8, s20
          s_mov_b32 s9, s21
          s_mov_b32 s10, 1605632
          s_mov_b32 s11, 0x20000
          s_mul_i32 s39, s44, 6144
          s_add_u32 s39, s39, {L_WW}""")
    consumer("s14", "s15")
    A(f"""s_lshl_b32 s12, s14, 7
          s_and_b32 s48, s44, 1
          s_lshl_b32 s48, s48, 6
          s_add_u32 s12, s12, s48
          s_lshr_b32 s48, s44, 1
          s_lshl_b32 s48, s48, 2
          s_add_u32 s12, s12, s48
          s_mul_i32 s12, s12, 896
          s_lshl_b32 s48, s15, 7
          s_add_u32 s12, s12, s48
          s_mul_i32 s13, s14, {56*896}
          s_add_u32 s13, s13, s48
          s_mul_i32 s48, s44, {16*896}
          s_add_u32 s13, s13, s48
          v_lshrrev_b32 v1, 3, v0
          v_and_b32 v6, 6, v1
          v_xor_b32 v6, v6, v0
          v_and_b32 v6, 7, v6
          v_lshlrev_b32 v6, 4, v6
          v_mul_u32_u24 v{X(1)}, 896, v1
          v_add_u32 v{X(1)}, v{X(1)}, v6
          v_lshrrev_b32 v7, 5, v0
          v_mul_u32_u24 v7, {4*896}, v7
          v_add_u32 v{X(0)}, v{X(1)}, v7
          v_and_b32 v6, 1, v3
          v_cmp_eq_u32 vcc, 1, v6
          v_mov_b32 v7, 0xffff
          v_mov_b32 v{VT}, 0xffff0000
          v_cndmask_b32 v7, v7, v{VT}, vcc
          v_bfe_u32 v6, v3, 1, 2""")
    for r in range(4):
        A(f"""v_cmp_eq_u32 vcc, {r}, v6
              v_mov_b32 v{VACC+2*r}, 0
              v_mov_b32 v{VACC+2*r+1}, 0
              v_cndmask_b32 v{VMASK+r}, 0, v7, vcc""")
    A(f"""v_mov_b32 v{VM}, 0xff7fffff
          v_mov_b32 v{VZ}, 0
          v_lshrrev_b32 v1, 3, v3
          v_lshlrev_b32 v{X(2)}, 9, v1
          v_lshl_add_u32 v{X(2)}, v2, 6, v{X(2)}
          v_and_b32 v{VT}, 3, v3
          v_lshl_add_u32 v{X(2)}, v{VT}, 4, v{X(2)}
          v_lshlrev_b32 v{X(3)}, 4, v0
          v_and_b32 v{VGS}, 0x38, v0
          s_lshl_b32 s48, s44, 6
          v_add_u32 v{VSA}, s48, v{VGS}
          v_lshrrev_b32 v{VT+2}, 1, v2
          v_and_b32 v{VT}, 1, v2
          v_and_b32 v{VT+1}, 7, v3
          v_lshlrev_b32 v{X(4)}, 15, v{VT+2}
          v_lshl_add_u32 v{X(4)}, v{VT}, 8, v{X(4)}
          v_lshl_add_u32 v{X(4)}, v3, 4, v{X(4)}
          s_lshl_b32 s16, s64, 16
          s_lshl_b32 s48, s66, 9
          s_add_u32 s16, s16, s48
          s_add_u32 s16, s16, {W_O}
          s_add_u32 s26, s16, 0x4000
          v_lshrrev_b32 v{X(5)}, 3, v0
          v_lshlrev_b32 v{X(5)}, 9, v{X(5)}
          v_lshl_add_u32 v{X(5)}, v{VT+1}, 4, v{X(5)}
          s_lshl_b32 s17, s14, 14
          s_lshl_b32 s48, s44, 7
          s_add_u32 s17, s17, s48
          s_add_u32 s17, s17, {W_O}
          s_add_u32 s66, s17, 0x1000
          s_add_u32 s65, s17, 0x2000
          s_add_u32 s31, s17, 0x3000
          v_lshlrev_b32 v{X(6)}, 7, v1
          v_lshl_add_u32 v{X(6)}, v2, 3, v{X(6)}
          v_lshlrev_b32 v{X(7)}, 3, v{VT+2}
          v_lshlrev_b32 v{X(8)}, 8, v{VT+2}
          v_lshl_add_u32 v{X(8)}, v{VT}, 2, v{X(8)}
          v_and_b32 v4, 3, v0
          v_lshl_add_u32 v{X(8)}, v4, 4, v{X(8)}
          v_bfe_u32 v4, v0, 2, 1
          v_lshl_add_u32 v{X(8)}, v4, 3, v{X(8)}
          s_lshl_b32 s48, s44, 6
          v_add_u32 v{X(8)}, s48, v{X(8)}
          v_lshlrev_b32 v{X(9)}, 8, v1
          v_lshl_add_u32 v{X(9)}, v2, 4, v{X(9)}
          v_mul_u32_u24 v{X(11)}, 896, v{VT+2}
          v_lshl_add_u32 v{X(11)}, v3, 1, v{X(11)}
          s_mov_b32 s60, 0x00800100
          s_mov_b32 s61, 0x00800100
          v_lshl_add_u32 v{X(10)}, v{VT+2}, 3, v{VT}
          v_mul_u32_u24 v{X(10)}, {astr}, v{X(10)}
          v_cndmask_b32 v4, v{VT+1}, 8, s[60:61]
          v_lshl_add_u32 v{X(10)}, v4, 2, v{X(10)}
          v_lshlrev_b32 v{X(12)}, 2, v1
          v_mov_b32 v{X(13)}, 0xffffff00
          v_mov_b32 v{X(14)}, 1
          v_mul_u32_u24 v{X(15)}, {cs}, v0
          v_lshrrev_b32 v4, 2, v0
          v_lshlrev_b32 v5, 7, v4
          v_and_b32 v{VT}, 3, v0
          v_lshl_add_u32 v5, v{VT}, 3, v5
          v_bfe_u32 v4, v4, 1, 2
          v_xor_b32 v4, s44, v4
          v_lshl_add_u32 v5, v4, 5, v5
          s_lshl_b32 s18, s15, 3
          s_add_u32 s18, s18, s44
          s_mul_i32 s18, s18, {2*astr}
          s_add_u32 s18, s18, {W_A}
          s_lshl_b32 s19, s15, 7
          s_lshl_b32 s48, s44, 5
          s_add_u32 s19, s19, s48
          s_mov_b32 s20, s24
          s_mov_b32 s21, s25
          s_mov_b32 s22, 1792
          s_mov_b32 s23, 0x20000
          s_mul_i32 s48, s14, {cs}
          s_add_u32 s48, s48, {W_CNT + cs//2}
          s_add_u32 s24, s28, s48
          s_addc_u32 s25, s29, 0
          s_mul_i32 s30, s64, {4*cs}
          s_add_u32 s30, s30, {W_CNT + cs//2}
          s_branch L_pro1
          L_tch3:
          s_branch L_tback
          L_pro1:""")
    quad(0, 3)
    stamp(1)
    for n in range(1, NB):
        A(f"s_add_u32 s45, s38, {tconst(n)}")
        for k in range(4): quad(n, k)
    stamp(2)
    ldswait("L_qw", L_F, 1, VZ, VT)
    A(f"ds_read_b128 v[{VQ}:{VQ+3}], v{X(2)} offset:{L_Q}")
    A(f"ds_read_b128 v[{VQ+4}:{VQ+7}], v{X(2)} offset:{L_Q+256}")
    stamp(3)
    A("""s_add_u32 s67, s67, 0x01010101
         s_and_b32 s68, s67, 0xff
         s_bfe_u32 s69, s67, 0x80008
         s_bfe_u32 s70, s67, 0x80010
         s_lshr_b32 s71, s67, 24
         s_waitcnt lgkmcnt(0)""")
    C("---- K phase: 16 tiles of 16 keys; s46 = first tile of the trip, s49 = next tile to load")
    def qk_mfma(n, ks):
        b = buf(n)
        for kk in ks:
            A(f"v_mfma_f32_16x16x32_bf16 v[{VS+4*kk}:{VS+4*kk+3}], v[{b+8*kk}:{b+8*kk+3}], v[{VQ}:{VQ+3}], 0")
        for kk in ks:
            A(f"v_mfma_f32_16x16x32_bf16 v[{VS+4*kk}:{VS+4*kk+3}], v[{b+8*kk+4}:{b+8*kk+7}], v[{VQ+4}:{VQ+7}], v[{VS+4*kk}:{VS+4*kk+3}]")
    def qk_red(n):
        for kk in range(4): A(f"v_mov_b32_dpp v{VT+kk}, v{VS+4*kk} quad_perm:[0,0,0,0] {dppf}")
        for c in range(1, 4):
            for kk in range(4): A(f"v_add_f32_dpp v{VT+kk}, v{VS+4*kk+c}, v{VT+kk} quad_perm:[{c},{c},{c},{c}] {dppf}")
        A(f"""v_cvt_pk_bf16_f32 v{VT+4}, v{VT}, v{VT+1}
              v_cvt_pk_bf16_f32 v{VT+5}, v{VT+2}, v{VT+3}
              v_max3_f32 v{VM}, v{VM}, v{VT}, v{VT+1}
              ds_write_b64 v{VSA}, v[{VT+4}:{VT+5}] offset:{L_S + 256*n}
              v_max3_f32 v{VM}, v{VM}, v{VT+2}, v{VT+3}""")
    for n in range(NB):
        nn = (n + 1) % NB
        A(f"""L_k{n}:
              s_cmp_eq_u32 s46, 0
              s_cbranch_scc1 {f"L_kc{n}" if n else "L_ka0"}""")
        if n == NB - 1:
            A("""s_cmp_eq_u32 s46, 12
                 s_cbranch_scc1 L_ktov
                 L_kgo:""")
        dep("s45", "s38", "s49", TN, pos)
        A("s_add_u32 s49, s49, 1")
        quad(nn, 0); quad(nn, 1)
        if n == NB - 1: A("L_kc3:")
        quad(nn, 2)
        if ksplit:
            If = n < NB - 1
            if If: A(f"s_cmp_eq_u32 s46, 0\nL_ka{n}:")
            qk_mfma(n, range(4))
            if If: A(f"s_cbranch_scc1 L_kb{n}")
            quad(nn, 3)
            if If: A(f"L_kb{n}:")
            A("s_nop 3" if If else "s_nop 1")
        else:
            quad(nn, 3)
            A(f"L_ka{n}:")
            qk_mfma(n, range(4))
            A("s_nop 4")
        qk_red(n)
        if n == 1: A("s_branch L_k2\nL_tch4:\ns_branch L_tback")
    A(f"""v_add_u32 v{VSA}, {256*NB}, v{VSA}
          s_add_u32 s46, s46, {NB}
          s_cmp_lt_u32 s46, 16
          s_cbranch_scc1 L_k0""")
    C("---- K -> V: maximum over this wave's 256 keys, first scores")
    A(f"""s_mov_b64 exec, 1
          ds_add_u32 v{VZ}, v{X(14)} offset:{L_F+8}
          s_mov_b64 exec, -1
          v_subrev_u32 v{VSA}, {256*SV}, v{VSA}
          v_mov_b32 v{VT}, v{VM}
          ds_read_b64 v[{VSC}:{VSC+1}], v{VSA} offset:{L_S}
          s_mov_b32 s46, 1
          v_permlane16_swap_b32 v{VM}, v{VT}
          v_max_f32 v{VM}, v{VM}, v{VT}
          v_mov_b32 v{VT}, v{VM}
          s_nop 1
          v_permlane32_swap_b32 v{VM}, v{VT}
          v_max_f32 v{VM}, v{VM}, v{VT}
          v_cvt_pk_bf16_f32 v{VM}, v{VM}, v{VM}
          v_and_b32 v{VM}, 0xffff0000, v{VM}
          v_mul_f32 v{VMC}, s52, v{VM}""")
    stamp(10)
    A("s_branch L_v0")
    for n in (1, 2):
        A(f"L_kc{n}:")
        if n == 1: A(f"s_add_u32 s45, s38, {tconst(4)}\ns_mov_b32 s49, 5\ns_cmp_eq_u32 s46, 0")
        quad(0, n - 1)
        A(f"s_branch L_ka{n}")
    A(f"""L_ktov:
          s_mov_b32 s32, s36
          s_mov_b32 s33, s37
          s_mov_b32 s49, {PT}
          v_lshlrev_b32 v{VO}, 9, v2
          v_lshl_add_u32 v{VO}, v3, 4, v{VO}""")
    quads()
    A("s_branch L_kgo")
    page()
    A("L_tch5:\ns_branch L_tch6")
    if oddv is not None: oddc[0] = oddv
    def probs(sc):
        A(f"""v_lshlrev_b32 v{VT}, 16, v{sc}
              v_and_b32 v{VT+1}, 0xffff0000, v{sc}
              v_lshlrev_b32 v{VT+2}, 16, v{sc+1}
              v_and_b32 v{VT+3}, 0xffff0000, v{sc+1}""")
        for kk in range(4): A(f"v_fma_f32 v{VT+kk}, v{VT+kk}, s52, -v{VMC}")
        for kk in range(4): A(f"v_exp_f32 v{VT+kk}, v{VT+kk}")
        for kk in range(4): A(f"v_cvt_pk_bf16_f32 v{VT+kk}, v{VT+kk}, v{VT+kk}")
        for kk in range(4):
            for r in range(4): A(f"v_and_b32 v{VA+4*kk+r}, v{VT+kk}, v{VMASK+r}")
    def pv(n, ks=range(4)):
        b = buf(n)
        for kk in ks:
            for hf in range(2):
                A(f"v_mfma_f32_16x16x32_bf16 v[{VACC+4*hf}:{VACC+4*hf+3}], v[{VA+4*kk}:{VA+4*kk+3}], v[{b+8*kk+4*hf}:{b+8*kk+4*hf+3}], v[{VACC+4*hf}:{VACC+4*hf+3}]")
    C("---- V phase: s46 = tiles started, s53 = ticket, s57 = 1 when the tile being loaded is a half tile")
    for n in range(2):
        sc, scn = VSC + 2 * n, VSC + 2 * (1 - n)
        A(f"""L_v{n}:
              s_waitcnt lgkmcnt(0)
              s_cmp_lt_u32 s46, {SV}
              s_cbranch_scc0 L_vd{n}
              v_add_u32 v{VSA}, 256, v{VSA}""")
        dep("s45", "s38", "s49", TN, pos)
        A(f"""s_add_u32 s49, s49, 1
              ds_read_b64 v[{scn}:{scn+1}], v{VSA} offset:{L_S}""")
        quad(1 - n, 0); quad(1 - n, 1)
        A(f"""L_vb{n}:
              s_add_u32 s46, s46, 1
              s_cmp_lt_u32 s46, {SV}
              s_cbranch_scc1 L_noat{n}""")
        if n == SV % 2:
            A(f"""s_cmp_eq_u32 s46, {SV}
                  s_cbranch_scc1 L_norm
                  L_normx:""")
        A(f"""s_mov_b32 s53, 1
              s_atomic_add s53, s[50:51], 0 glc
              L_noat{n}:""")
        probs(sc)
        for _ in range(vpad): A(f"v_max_f32 v{VT+4}, v{VT+4}, v{VT+4}")
        if HT: A(f"s_cmp_eq_u32 s57, 1\ns_cbranch_scc1 L_vh{n}")
        A(f"""s_waitcnt vmcnt({WG + 1})
              s_cmp_le_u32 s46, {SV}
              s_cbranch_scc0 L_vc{n}
              s_waitcnt vmcnt({WG})
              L_vc{n}:""")
        quad(1 - n, 2, wait=False); quad(1 - n, 3)
        if n == (SV - tlate) % 2:
            A(f"""s_cmp_eq_u32 s46, {SV - tlate}
                  s_cbranch_scc0 L_vp{n}
                  ds_write_b32 v{VZ}, v{X(14)} offset:{L_F+20}""")
        A(f"L_vp{n}:")
        pv(n)
        if n == 1: A("s_branch L_v0")
    A("L_tch6:\ns_branch L_tch7")
    C("before the first ticket: switch the accumulators to the row's global log-sum-exp, fetch the GLU operands")
    A("L_norm:")
    ldswait("L_f2w", L_F, 2, VZ, VT + 7)
    A(f"ds_read_b32 v{VT+4}, v{X(12)} offset:{L_LS}")
    for k in range(4): A(f"ds_read_b64 v[{HR+4+2*k}:{HR+5+2*k}], v{X(6)} offset:{L_H + 32*k}")
    A(f"""ds_read_b64 v[{HR+2}:{HR+3}], v{X(7)} offset:{L_GT}
          s_waitcnt lgkmcnt(0)
          v_sub_f32 v{VT+5}, v{VMC}, v{VT+4}
          v_exp_f32 v{VT+5}, v{VT+5}
          v_mov_b32 v{VMC}, v{VT+4}
          v_mov_b32 v{VT+6}, v{VT+5}
          s_nop 1
          v_mov_b32_dpp v{VT+6}, v{VT+5} row_ror:8 row_mask:0x3 bank_mask:0xc
          s_nop 1
          v_mov_b32_dpp v{VT+6}, v{VT+5} row_ror:8 row_mask:0xc bank_mask:0x3""")
    for r in range(8): A(f"v_mul_f32 v{VACC+r}, v{VACC+r}, v{VT+6}")
    A("s_branch L_normx")
    for n in range(2):
        scn = VSC + 2 * (1 - n)
        A(f"""L_vd{n}:
              s_cmp_ge_u32 s53, {U + HT}
              s_cbranch_scc1 L_dry{n}""")
        if HT:
            assert U - HT >= 4
            A(f"""s_sub_u32 s56, s53, {U - HT}
                  s_cselect_b32 s56, 0, s56
                  s_cselect_b32 s57, 0, 1
                  s_add_u32 s54, s56, 1
                  s_lshr_b32 s54, s54, 1
                  s_sub_u32 s53, s53, s54
                  s_and_b32 s56, s56, 1""")
        A(f"""s_cmp_ge_u32 s53, {8*PT}
              s_cselect_b32 s55, {8*(8-PT)}, 0
              s_add_u32 s53, s53, s27
              s_add_u32 s53, s53, s55
              s_lshl_b32 s55, s53, 6
              s_add_u32 s55, s55, s58""")
        dep("s45", "s47", "s53", dorder, pos)
        if HT:
            A(f"""s_cmp_eq_u32 s57, 0
                  s_cbranch_scc1 L_vf{n}
                  s_lshl_b32 s54, s56, 2
                  s_add_u32 s55, s55, s54
                  s_lshl_b32 s54, s56, {pos['h']}
                  s_add_u32 s45, s45, s54
                  s_sub_u32 s45, s45, {1 << pos['h']}
                  v_mov_b32 v{scn}, 0xff80ff80
                  s_waitcnt vmcnt(4)
                  buffer_load_dword v{scn+1}, v{VGS}, s[40:43], s55 offen sc1""")
            ld(1 - n, 4); ld(1 - n, 5)
            A(f"""s_branch L_vb{n}
                  L_vh{n}:
                  s_waitcnt vmcnt(5)""")
            ld(1 - n, 6); ld(1 - n, 7)
            A(f"""s_waitcnt vmcnt(5)
                  s_branch L_vp{n}
                  L_vf{n}:""")
        A(f"""s_waitcnt vmcnt({WG})
              buffer_load_dwordx2 v[{scn}:{scn+1}], v{VGS}, s[40:43], s55 offen sc1""")
        quad(1 - n, 0, 1, wait=False); quad(1 - n, 1, 1)
        A(f"s_branch L_vb{n}")
    A("L_tch7:\ns_branch L_tch8")
    C("---- last tile of this wave")
    for n in range(2):
        A(f"L_dry{n}:")
        if HT: A(f"""s_cmp_eq_u32 s57, 0
                     s_cbranch_scc1 L_dw{n}
                     s_waitcnt vmcnt(4)
                     L_dw{n}:""")
        A("s_waitcnt vmcnt(8)")
        probs(VSC + 2 * n)
        A(f"s_mov_b32 s59, {spin}\ns_waitcnt vmcnt(4)")
        pv(n, (0, 1))
        C("the fourth wave to have three quads announces that this workgroup is about to publish")
        A(f"""s_mov_b64 exec, 1
              s_waitcnt vmcnt(2)
              ds_add_rtn_u32 v{VT+1}, v{VZ}, v{X(14)} offset:{L_F+24}
              s_mov_b64 exec, -1""")
        pv(n, (2,))
        A(f"""s_waitcnt lgkmcnt(0)
              v_readfirstlane_b32 s55, v{VT+1}
              s_cmp_eq_u32 s55, 3
              s_cbranch_scc0 L_nr{n}
              s_mov_b64 exec, 15
              buffer_atomic_add v{X(14)}, v{X(15)}, s[40:43], s30 offen sc1
              s_mov_b64 exec, 1
              s_waitcnt vmcnt(1)
              s_branch L_nr{n}b
              L_nr{n}:
              s_mov_b64 exec, 1
              s_waitcnt vmcnt(0)
              L_nr{n}b:""")
        stamp(4)
        A(f"""ds_add_rtn_u32 v{VT+1}, v{VZ}, v{X(14)} offset:{L_F+12}
              s_mov_b64 exec, -1""")
        pv(n, (3,))
        if n == 0: A("s_branch L_tail")
    C("arrival k: the first three park their partial in LDS slot k, the fourth adds them and publishes")
    A("L_tail:")
    RD = [VT + 4, VT + 8, HR + 16, HR + 20, HR + 24, HR + 28]
    def rdpark():
        A(f"ds_read_b32 v{VT}, v{VZ} offset:{L_F+16}")
        for k in range(3):
            for hf in range(2):
                A(f"ds_read_b128 v[{RD[2*k+hf]}:{RD[2*k+hf]+3}], v{X(3)} offset:{L_P + 2048*k + 1024*hf}")
    rdpark()
    A(f"""s_waitcnt lgkmcnt(7)
          v_readfirstlane_b32 s54, v{VT+1}
          s_cmp_eq_u32 s54, 3
          s_cbranch_scc1 L_finc
          s_lshl_b32 s54, s54, 11
          v_add_u32 v{VT+1}, s54, v{X(3)}
          ds_write_b128 v{VT+1}, v[{VACC}:{VACC+3}] offset:{L_P}
          ds_write_b128 v{VT+1}, v[{VACC+4}:{VACC+7}] offset:{L_P+1024}
          s_mov_b64 exec, 1
          ds_add_u32 v{VZ}, v{X(14)} offset:{L_F+16}
          s_branch L_pub_done
          L_tch8:
          s_branch L_tch9
          L_fin:""")
    rdpark()
    A(f"""L_finc:
          s_sub_u32 s59, s59, 1
          s_cbranch_scc1 L_finx
          s_waitcnt lgkmcnt(6)
          v_cmp_gt_u32 vcc, 3, v{VT}
          s_cbranch_vccnz L_fin
          L_finx:
          s_waitcnt lgkmcnt(4)""")
    for hf in range(2):
        for r in range(4): A(f"v_add_f32 v{VACC+4*hf+r}, v{VACC+4*hf+r}, v{RD[hf]+r}")
    A("s_waitcnt lgkmcnt(0)")
    for hf in range(2):
        for r in range(4): A(f"v_add_f32 v{RD[2+hf]+r}, v{RD[2+hf]+r}, v{RD[4+hf]+r}")
        for r in range(4): A(f"v_add_f32 v{VACC+4*hf+r}, v{VACC+4*hf+r}, v{RD[2+hf]+r}")
        for r in range(4): A(f"v_and_or_b32 v{VACC+4*hf+r}, v{VACC+4*hf+r}, v{X(13)}, s{68+r}")
        A(f"buffer_store_dwordx4 v[{VACC+4*hf}:{VACC+4*hf+3}], v{X(4)}, s[40:43], {'s26' if hf else 's16'} offen sc1")
    stamp(5)
    C("this wave's rows of w_down and wo to LDS; the publishing wave waits until the 32 producers of the row block have announced")
    A("""L_pub_done:
         s_mov_b64 exec, -1
         s_cmp_ge_u32 s2, 224
         s_cbranch_scc1 L_sdone
         s_add_u32 m0, s39, 4096""")
    for t in range(2):
        A(f"s_add_u32 s48, s13, {8*896*t}")
        A(f"buffer_load_dwordx4 v{X(1)}, s[8:11], s48 offen nt lds")
        A("s_add_u32 m0, s39, 5120" if t == 0 else "s_mov_b32 m0, s39")
    for t in range(4):
        A(f"s_add_u32 s48, s12, {16*896*t}")
        A(f"buffer_load_dwordx4 v{X(0)}, s[4:7], s48 offen nt lds")
        if t < 3: A(f"s_add_u32 m0, s39, {1024*(t+1)}")
    A(f"""s_mov_b32 s59, {spin}
          s_cmp_eq_u32 s54, 3
          s_cbranch_scc0 L_bwx
          L_bw:
          s_mov_b32 s54, 0
          s_atomic_add s54, s[24:25], 0 glc
          s_sub_u32 s59, s59, 1
          s_cbranch_scc1 L_bwx
          s_waitcnt lgkmcnt(0)
          s_cmp_lt_u32 s54, 32
          s_cbranch_scc1 L_bw
          L_bwx:
          s_barrier""")
    stamp(6)
    G0 = buf(0)
    OA = buf(0) + 16
    DA = buf(1)
    DB = buf(1) + 8
    def gather():
        for k, so in enumerate(("s17", "s66", "s65", "s31")):
            A(f"buffer_load_dwordx4 v[{G0+4*k}:{G0+4*k+3}], v{X(5)}, s[40:43], {so} offen sc1")
    gather()
    A(f"""s_mov_b32 s59, {spin}
          s_mov_b32 s49, 0x41f80000
          s_waitcnt vmcnt(4)
          s_barrier""")
    stamp(11)
    C("wave v owns 16 of the 64 columns: transposed operands of all 128 + 56 rows, GLU product meanwhile")
    for k in range(4): A(f"ds_read_b64_tr_b16 v[{VW+16+2*k}:{VW+17+2*k}], v5 offset:{L_WW + 6144*k + 4096}")
    for k in range(4):
        for u in range(2): A(f"ds_read_b64_tr_b16 v[{VW+4*k+2*u}:{VW+4*k+2*u+1}], v5 offset:{L_WW + 6144*k + 2048*u}")
    A(f"""s_waitcnt lgkmcnt(8)
          v_mfma_f32_16x16x32_bf16 v[{DB}:{DB+3}], v[{HR+4}:{HR+7}], v[{VW+16}:{VW+19}], 0
          v_mfma_f32_16x16x32_bf16 v[{DB}:{DB+3}], v[{HR+8}:{HR+11}], v[{VW+20}:{VW+23}], v[{DB}:{DB+3}]
          s_branch L_p1c
          L_p1:
          s_mov_b64 exec, vcc""")
    gather()
    A("L_p1c:\ns_waitcnt vmcnt(0)")
    for k in range(16): A(f"v_xor_b32 v{G0+k}, s{68+(k&3)}, v{G0+k}")
    for k in range(4): A(f"v_or3_b32 v{VT+k}, v{G0+3*k}, v{G0+3*k+1}, v{G0+3*k+2}")
    A(f"""v_or3_b32 v{VT}, v{VT}, v{G0+12}, v{G0+13}
          v_or3_b32 v{VT+1}, v{VT+1}, v{G0+14}, v{G0+15}
          v_or3_b32 v{VT}, v{VT}, v{VT+2}, v{VT+3}
          v_bitop3_b32 v{VT}, v{VT}, v{VT+1}, v{X(13)} bitop3:0x54
          s_sub_u32 s59, s59, 1
          v_cmp_ne_u32 vcc, 0, v{VT}
          s_cbranch_scc1 L_p1ok
          s_cbranch_vccnz L_p1
          L_p1ok:
          s_mov_b64 exec, -1""")
    stamp(7)
    C("sum over the 16 splits: lanes 0..31 end with batch 0, 32..63 with batch 1; even rows elements 0,1 of a granule, odd rows 2,3")
    for o in (0, 8, 2, 10): A(f"v_pk_add_f32 v[{G0+o}:{G0+o+1}], v[{G0+o}:{G0+o+1}], v[{G0+o+4}:{G0+o+5}]")
    for r in range(4): A(f"v_permlane32_swap_b32 v{G0+r}, v{G0+8+r}")
    for r in (0, 2, 1, 3): A(f"v_add_f32 v{G0+r}, v{G0+r}, v{G0+8+r}")
    A(f"""v_permlane16_swap_b32 v{G0}, v{G0+2}
          v_mul_f32 v{DB}, v{DB}, v{HR+3}
          v_permlane16_swap_b32 v{G0+1}, v{G0+3}
          v_add_f32 v{G0}, v{G0}, v{G0+2}
          v_add_f32 v{G0+1}, v{G0+1}, v{G0+3}
          s_nop 0
          v_add_f32_dpp v{G0}, v{G0}, v{G0} row_ror:8 {dppf}
          v_add_f32_dpp v{G0+1}, v{G0+1}, v{G0+1} row_ror:8 {dppf}
          v_cvt_pk_bf16_f32 v{G0}, v{G0}, v{G0+1}
          ds_write_b32 v{X(8)}, v{G0} offset:{L_R}
          s_waitcnt lgkmcnt(0)
          s_barrier""")
    stamp(8)
    for k in range(4): A(f"ds_read_b128 v[{OA+4*k}:{OA+4*k+3}], v{X(9)} offset:{L_R + 64*k}")
    for k in range(4):
        d = DA + 4 * (k & 1)
        A(f"s_waitcnt lgkmcnt({3-k})")
        A(f"v_mfma_f32_16x16x32_bf16 v[{d}:{d+3}], v[{OA+4*k}:{OA+4*k+3}], v[{VW+4*k}:{VW+4*k+3}], {'0' if k < 2 else f'v[{d}:{d+3}]'}")
    C("each 64-byte segment takes 8 sums and one arrival count in a single returning add; the last of the 32 adders writes the output")
    A(f"""s_mov_b32 exec_lo, 0xff8001ff
          s_mov_b32 exec_hi, 0xff8001ff
          s_nop 4
          v_fmac_f32 v{DB}, v{HR+2}, v{DA}
          v_fmac_f32 v{DB}, v{HR+2}, v{DA+4}
          v_cndmask_b32 v22, v{DB}, 1.0, s[60:61]
          buffer_atomic_add_f32 v22, v{X(10)}, s[40:43], s18 offen sc0 sc1
          s_waitcnt vmcnt(0)""")
    stamp(9)
    A(f"""v_cmp_eq_f32 vcc, s49, v22
          v_add_f32 v20, v{DB}, v22
          s_bfe_i32 s56, vcc_lo, 0x10008
          s_bfe_i32 s57, vcc_lo, 0x10017
          s_bfe_i32 s62, vcc_hi, 0x10008
          s_bfe_i32 s63, vcc_hi, 0x10017
          v_cvt_pk_bf16_f32 v20, v20, v20
          s_pack_ll_b32_b16 s54, s56, s57
          s_pack_ll_b32_b16 s55, s62, s63
          s_and_b32 exec_lo, s54, 0xff0000ff
          s_and_b32 exec_hi, s55, 0xff0000ff
          s_cbranch_execz L_sdone
          buffer_store_short v20, v{X(11)}, s[20:23], s19 offen sc1
          s_cmp_eq_u32 s19, 0
          s_cbranch_scc0 L_sdone
          s_cmp_eq_u32 s56, 0
          s_cbranch_scc1 L_sdone
          s_mov_b64 exec, 1
          v_mov_b32 v20, s67
          buffer_store_dword v20, v{X(11)}, s[40:43], 0 offen sc1""")
    A("L_sdone:")
    dump(12)
    A("s_endpgm")

    page()
    A("L_tch1:\ns_branch L_tback")
    C("---- helper wave: s46 = tag of this launch, s50..s53 its bytes")
    A("L_helper:")
    instream[0] = False
    HX, HW, HD, HG = 16, 32, 88, 116
    A(f"""v_lshrrev_b32 v1, 2, v3
          v_lshl_add_u32 v1, v2, 2, v1
          v_lshlrev_b32 v8, 7, v1
          v_and_b32 v6, 3, v3
          v_lshl_add_u32 v8, v6, 3, v8
          v_bfe_u32 v1, v1, 1, 2
          v_lshlrev_b32 v1, 5, v1
          v_add_u32 v8, v8, v1
          v_xor_b32 v9, 32, v8
          v_xor_b32 v10, 64, v8
          v_xor_b32 v11, 0x60, v8
          v_and_b32 v14, 1, v3
          v_mul_u32_u24 v6, 896, v14
          v_lshl_add_u32 v6, v2, 3, v6
          v_bfe_u32 v7, v3, 1, 2
          v_lshl_add_u32 v7, v7, 2, v2
          v_lshlrev_b32 v7, 4, v7
          v_mov_b32 v15, 0xffffff00
          v_mov_b32 v30, 0
          v_and_b32 v1, 2, v3
          v_cmp_ne_u32 s[60:61], 0, v1
          v_and_b32 v1, 4, v3
          v_cmp_ne_u32 s[62:63], 0, v1
          s_lshl_b32 s57, s64, 13
          s_lshl_b32 s58, s31, 11
          s_add_u32 s57, s57, s58
          s_lshl_b32 s58, s30, 8
          s_add_u32 s57, s57, s58
          s_add_u32 s57, s57, {W_Q}
          s_mul_i32 s44, s31, 224
          v_add_u32 v1, s44, v6
          v_lshl_add_u32 v104, v14, 16, v7
          s_mov_b32 s47, 0
          s_waitcnt lgkmcnt(0)
          s_add_u32 s46, s46, 0x01010101
          s_and_b32 s50, s46, 0xff
          s_bfe_u32 s51, s46, 0x80008
          s_bfe_u32 s52, s46, 0x80010
          s_lshr_b32 s53, s46, 24
          s_waitcnt vmcnt(2)""")
    stamp(1)
    C("two trips: x times the wq tile, then x times a tile of w_gate or w_up; partial sums go out with the tag in the low byte")
    A("L_tile:")
    for k in range(7):
        A(f"ds_read_b64 v[{HX+2*k}:{HX+2*k+1}], v1 offset:{L_X + 32*k}")
        for ct in range(4):
            r = HW + 14 * ct + 2 * k
            A(f"ds_read_b64_tr_b16 v[{r}:{r+1}], v{8+ct} offset:{L_W + 2048*k}")
    A("s_waitcnt lgkmcnt(0)")
    for ct in range(4):
        r = HW + 14 * ct + 12
        A(f"v_mfma_f32_16x16x16_bf16 v[{HD+4*ct}:{HD+4*ct+3}], v[{r}:{r+1}], v[{HX+12}:{HX+13}], 0")
    A("s_nop 2")
    for k2 in range(3):
        for ct in range(4):
            r = HW + 14 * ct + 4 * k2
            A(f"v_mfma_f32_16x16x32_bf16 v[{HD+4*ct}:{HD+4*ct+3}], v[{r}:{r+3}], v[{HX+4*k2}:{HX+4*k2+3}], v[{HD+4*ct}:{HD+4*ct+3}]")
    A("s_nop 5")
    for r in range(4): A(f"v_cndmask_b32 v{HD+r}, v{HD+r}, v{HD+4+r}, s[60:61]")
    for r in range(4): A(f"v_cndmask_b32 v{HD+8+r}, v{HD+8+r}, v{HD+12+r}, s[60:61]")
    for r in range(4): A(f"v_cndmask_b32 v{HD+r}, v{HD+r}, v{HD+8+r}, s[62:63]")
    for r in range(4): A(f"v_and_or_b32 v{HD+r}, v{HD+r}, v15, s{50+r}")
    A(f"""s_mov_b32 exec_lo, 0x00ff00ff
          s_mov_b32 exec_hi, 0x00ff00ff
          buffer_store_dwordx4 v[{HD}:{HD+3}], v104, s[40:43], s57 offen sc1
          s_mov_b64 exec, -1
          s_cmp_eq_u32 s47, 1
          s_cbranch_scc1 L_tiledone""")
    stamp(2)
    C("zero what later atomics add to: ticket counters (splits 0..3), arrival counters (batch 0, splits 8..11), output segments (workgroups 32..38)")
    A(f"""s_waitcnt vmcnt(1)
          s_and_b32 s67, s2, 15
          s_lshr_b32 s56, s2, 4
          s_lshl_b32 s56, s56, 2
          s_and_b32 s57, s2, 3
          s_add_u32 s56, s56, s57
          s_mul_i32 s56, s56, {cs}
          s_add_u32 s56, s56, {W_CNT}
          s_cmp_lt_u32 s67, 4
          s_cbranch_scc1 L_z1
          s_add_u32 s56, s56, {cs//2}
          s_and_b32 s57, s2, 0x8c
          s_cmp_eq_u32 s57, 8
          s_cbranch_scc0 L_noz1
          L_z1:
          s_mov_b64 exec, 1
          buffer_store_dword v30, v30, s[40:43], s56 offen sc1
          s_mov_b64 exec, -1
          L_noz1:
          s_sub_u32 s44, s2, 32
          s_cmp_lt_u32 s44, 7
          s_cbranch_scc0 L_noz2
          v_lshrrev_b32 v1, 2, v0
          v_mul_u32_u24 v1, {astr}, v1
          v_and_b32 v31, 3, v0
          v_lshl_add_u32 v1, v31, 4, v1
          v_mov_b32 v32, 0
          v_mov_b32 v33, 0
          v_mov_b32 v34, 0
          v_mov_b32 v35, 0
          s_mul_i32 s56, s44, {16*astr}
          s_add_u32 s56, s56, {W_A}
          buffer_store_dwordx4 v[32:35], v1, s[40:43], s56 offen sc1
          L_noz2:
          s_cmp_ge_u32 s67, 14
          s_cbranch_scc1 L_gate
          s_lshr_b32 s45, s2, 4
          s_mul_i32 s45, s45, 14
          s_add_u32 s55, s67, s45
          s_mul_i32 s54, s55, 2341
          s_lshr_b32 s54, s54, 16
          s_mul_i32 s45, s54, 28
          s_sub_u32 s55, s55, s45
          s_and_b32 s56, s54, 3
          s_mul_i32 s48, s56, {112*3584}
          s_lshl_b32 s45, s55, 7
          s_add_u32 s48, s48, s45
          v_mul_u32_u24 v4, 3584, v13
          v_add_u32 v4, v4, v12
          s_cmp_ge_u32 s54, 4
          s_cselect_b32 s36, s18, s16
          s_cselect_b32 s37, s19, s17
          s_mov_b32 s38, 1605632""")
    assert all((i * 2341) >> 16 == i // 28 for i in range(224))
    tile_dma("L_gdma", 3584)
    A("s_branch L_gate\nL_tch2:\ns_branch L_tback")
    C("mixing gate g = sigmoid(sum(x * gate_w)) with the reference's roundings")
    A(f"""L_gate:
          v_lshrrev_b32 v1, 5, v0
          v_mul_u32_u24 v1, 896, v1
          v_add_u32 v1, v1, v107
          ds_read_b128 v[40:43], v1 offset:{L_X}
          ds_read_b128 v[44:47], v1 offset:{L_X+16}
          v_mov_b32 v{HG}, 0
          s_mov_b32 exec_lo, 0x0fffffff
          s_mov_b32 exec_hi, 0x0fffffff
          s_waitcnt lgkmcnt(0)""")
    for k in range(8):
        A(f"""v_lshlrev_b32 v48, 16, v{108+k}
              v_and_b32 v49, 0xffff0000, v{108+k}
              v_lshlrev_b32 v50, 16, v{40+k}
              v_and_b32 v51, 0xffff0000, v{40+k}
              v_mul_f32 v48, v48, v50
              v_mul_f32 v49, v49, v51
              v_cvt_pk_bf16_f32 v48, v48, v49
              v_lshlrev_b32 v49, 16, v48
              v_and_b32 v48, 0xffff0000, v48
              v_add_f32 v{HG}, v{HG}, v49
              v_add_f32 v{HG}, v{HG}, v48""")
    A("s_mov_b64 exec, -1")
    for d in red + ("row_mirror",):
        A(f"s_nop 1\nv_add_f32_dpp v{HG}, v{HG}, v{HG} {d} {dppf}")
    A(f"""v_mov_b32 v48, v{HG}
          s_nop 1
          v_permlane16_swap_b32 v{HG}, v48
          v_add_f32 v{HG}, v{HG}, v48
          v_cvt_pk_bf16_f32 v{HG}, v{HG}, v{HG}
          v_and_b32 v{HG}, 0xffff0000, v{HG}
          v_mul_f32 v{HG}, 0x{f2u(-LOG2E):08x}, v{HG}
          v_exp_f32 v{HG}, v{HG}
          s_nop 0
          v_add_f32 v{HG}, 1.0, v{HG}
          v_rcp_f32 v{HG}, v{HG}
          s_nop 0
          v_cvt_pk_bf16_f32 v{HG}, v{HG}, v{HG}
          v_and_b32 v{HG}, 0xffff0000, v{HG}
          v_sub_f32 v{HG+1}, 1.0, v{HG}
          v_cvt_pk_bf16_f32 v{HG+1}, v{HG+1}, v{HG+1}
          v_and_b32 v{HG+1}, 0xffff0000, v{HG+1}
          v_lshrrev_b32 v1, 2, v0
          s_mov_b32 exec_lo, 1
          s_mov_b32 exec_hi, 1
          ds_write_b64 v1, v[{HG}:{HG+1}] offset:{L_GT}
          s_mov_b64 exec, -1
          s_waitcnt vmcnt(0)
          s_cmp_ge_u32 s67, 14
          s_cbranch_scc1 L_tiledone
          s_mov_b32 s47, 1
          s_mul_i32 s57, s54, {2*7168}
          s_lshl_b32 s44, s55, 8
          s_add_u32 s57, s57, s44
          s_add_u32 s57, s57, {W_G}
          s_mul_i32 s44, s56, 224
          v_add_u32 v1, s44, v6
          v_mul_u32_u24 v104, 7168, v14
          v_add_u32 v104, v104, v7
          s_branch L_tile""")
    C("gather the four partial sums of q for this (batch, kv head)")
    A("L_tiledone:")
    stamp(4)
    def untag(base, n):
        for k in range(n):
            for r in range(4): A(f"v_xor_b32 v{base+4*k+r}, s{50+r}, v{base+4*k+r}")
        regs = [base + i for i in range(4 * n)]
        A(f"v_or3_b32 v1, v{regs[0]}, v{regs[1]}, v{regs[2]}")
        i = 3
        while i < len(regs):
            if i + 1 < len(regs): A(f"v_or3_b32 v1, v1, v{regs[i]}, v{regs[i+1]}"); i += 2
            else: A(f"v_or_b32 v1, v1, v{regs[i]}"); i += 1
        A("v_and_b32 v1, 0xff, v1")
    A(f"""s_lshr_b32 s58, s2, 4
          s_lshl_b32 s58, s58, 13
          s_add_u32 s58, s58, {W_Q}
          v_add_u32 v105, 0x1000, v5
          s_mov_b32 s59, {spin}
          L_qpoll:""")
    for rb in range(4):
        for hf in range(2):
            o = rb * 2048 + hf * 1024
            A(f"buffer_load_dwordx4 v[{32+8*rb+4*hf}:{35+8*rb+4*hf}], {'v5' if o < 4096 else 'v105'}, s[40:43], s58 offen offset:{o & 4095} sc1")
    A("s_waitcnt vmcnt(0)")
    untag(32, 8)
    A("""v_cmp_ne_u32 vcc, 0, v1
         s_sub_u32 s59, s59, 1
         s_cbranch_scc1 L_qok
         s_cbranch_vccz L_qok
         s_mov_b64 exec, vcc
         s_branch L_qpoll
         L_qok:
         s_mov_b64 exec, -1""")
    for r in range(8): A(f"v_add_f32 v{32+r}, v{32+r}, v{40+r}")
    for r in range(8): A(f"v_add_f32 v{48+r}, v{48+r}, v{56+r}")
    for r in range(8): A(f"v_add_f32 v{32+r}, v{32+r}, v{48+r}")
    for r in range(4): A(f"v_cvt_pk_bf16_f32 v{32+r}, v{32+2*r}, v{33+2*r}")
    A(f"""v_lshlrev_b32 v1, 3, v0
          v_mov_b32 v37, 1
          ds_write_b64 v1, v[32:33] offset:{L_Q}
          ds_write_b64 v1, v[34:35] offset:{L_Q+512}
          s_waitcnt lgkmcnt(0)
          ds_write_b32 v30, v37 offset:{L_F}""")
    stamp(3)
    A("s_branch L_tch5\nL_tch9:")
    C("after the K phase: export the scores of the shared tiles, publish max-shifted log-sum-exp of the 1024 keys")
    SP = {n: 6 + i for i, n in enumerate(dorder)}
    A(f"""s_lshr_b32 s45, s2, 4
          s_lshl_b32 s45, s45, 15
          s_add_u32 s45, s45, {W_S}""")
    dep("s45", "s45", "s2", ["x0", "x1", "x2", "p"], SP)
    A("v_and_b32 v4, 3, v0\nv_lshlrev_b32 v4, 4, v4")
    for i, nm in enumerate(["w0", "w1", "t0", "t1"]):
        A(f"v_bfe_u32 v1, v0, {2+i}, 1\nv_lshl_add_u32 v4, v1, {SP[nm]}, v4")
    ldswait("L_kw", L_F + 8, 4, 30, 31, sleep=16)
    for k in range(4): A(f"ds_read_b128 v[{80+4*k}:{83+4*k}], v5 offset:{L_S + 1024*k}")
    nl = PT * 16
    A(f"""s_mov_b32 s47, 0x{f2u(LOG2E/16):08x}
          s_mov_b32 exec_lo, 0x{(1 << min(nl, 32)) - 1:x}
          s_mov_b32 exec_hi, 0x{(1 << max(nl - 32, 0)) - 1:x}
          s_waitcnt lgkmcnt(0)
          {"s_nop 0" if xe else "buffer_store_dwordx4 v[80:83], v4, s[40:43], s45 offen sc1"}
          s_mov_b64 exec, -1""")
    for k in range(4):
        for d in range(4):
            h, o = d >> 1, 4 * k + 2 * (d & 1)
            A(f"v_lshlrev_b32 v{48+16*h+o}, 16, v{80+4*k+d}")
            A(f"v_and_b32 v{48+16*h+o+1}, 0xffff0000, v{80+4*k+d}")
    def allred(op, regs, full=True):
        for d in red + ("row_mirror",):
            A("s_nop 0")
            for r in regs: A(f"{op}_dpp v{r}, v{r}, v{r} {d} {dppf}")
        if full:
            for sw in ("v_permlane16_swap_b32", "v_permlane32_swap_b32"):
                for r in regs: A(f"v_mov_b32 v{r+2}, v{r}")
                A("s_nop 1")
                for r in regs: A(f"{sw} v{r}, v{r+2}")
                for r in regs: A(f"{op} v{r}, v{r}, v{r+2}")
    for h in range(2):
        b = 48 + 16 * h
        A(f"v_max3_f32 v{32+h}, v{b}, v{b+1}, v{b+2}")
        for i in range(3, 15, 2): A(f"v_max3_f32 v{32+h}, v{32+h}, v{b+i}, v{b+i+1}")
        A(f"v_max_f32 v{32+h}, v{32+h}, v{b+15}")
    allred("v_max_f32", [32, 33])
    for h in range(2): A(f"v_mul_f32 v{32+h}, s47, v{32+h}")
    for i in range(32): A(f"v_fma_f32 v{48+i}, v{48+i}, s47, -v{32+(i>>4)}")
    for i in range(32): A(f"v_exp_f32 v{48+i}, v{48+i}")
    for h in range(2): A(f"v_add_f32 v{36+h}, v{48+16*h}, v{49+16*h}")
    for i in range(2, 16):
        for h in range(2): A(f"v_add_f32 v{36+h}, v{36+h}, v{48+16*h+i}")
    allred("v_add_f32", [36, 37])
    A(f"""v_log_f32 v36, v36
          v_log_f32 v37, v37
          v_mov_b32 v35, s46
          v_add_f32 v32, v32, v36
          v_add_f32 v34, v33, v37
          v_mov_b32 v33, s46
          s_lshl_b32 s44, s2, 4
          s_add_u32 s44, s44, {W_T}
          s_mov_b64 exec, 1
          s_waitcnt vmcnt(0)
          buffer_store_dwordx4 v[32:35], v5, s[40:43], s44 offen sc1
          s_mov_b64 exec, -1
          s_and_b32 s44, s44, 0xfffff700
          s_lshr_b32 s45, s2, 7
          v_xor_b32 v6, s45, v2
          v_and_b32 v6, 1, v6
          v_lshlrev_b32 v6, 11, v6
          v_lshl_add_u32 v6, v3, 4, v6
          v_and_b32 v1, 3, v0
          v_lshlrev_b32 v1, 1, v1
          v_bfe_u32 v14, v0, 2, 1
          v_add_u32 v1, v1, v14
          v_mul_u32_u24 v4, 7168, v1
          v_lshl_add_u32 v4, v13, 4, v4
          v_add_u32 v7, 128, v4""")
    consumer("s54", "s55")
    A(f"""s_mul_i32 s45, s54, 224
          s_lshl_b32 s47, s55, 8
          s_add_u32 s47, s47, {2*7168}
          s_sub_u32 s47, s47, s45
          s_mov_b32 exec_lo, 0
          s_mov_b32 exec_hi, 0xffff0000
          v_mov_b32 v7, s47
          s_mov_b64 exec, -1
          s_add_u32 s45, s45, {W_G}
          s_add_u32 s47, s45, {8*7168}""")
    stamp(7)
    C("late in the V phase: statistics of the kv head's 32 workgroups (rows alternate own / other batch), gate/up partials of 56 hidden units;")
    C("spare lanes look at the record of the workgroup that zeroed this column block's output segments")
    ldswait("L_tw", L_F + 20, 1, 30, 31, sleep=16)
    A(f"""s_mov_b32 s59, {spin}
          s_branch L_lp1
          L_lp:
          s_sleep 16
          L_lp1:
          buffer_load_dwordx4 v[40:43], v6, s[40:43], s44 offen sc1
          buffer_load_dwordx4 v[64:67], v4, s[40:43], s45 offen sc1
          buffer_load_dwordx4 v[68:71], v7, s[40:43], s45 offen sc1
          buffer_load_dwordx4 v[72:75], v4, s[40:43], s47 offen sc1
          buffer_load_dwordx4 v[76:79], v7, s[40:43], s47 offen sc1
          s_waitcnt vmcnt(0)""")
    untag(64, 4)
    A("""v_xor_b32 v41, s46, v41
         v_xor_b32 v43, s46, v43
         v_or3_b32 v1, v1, v41, v43
         s_sub_u32 s59, s59, 1
         v_cmp_ne_u32 vcc, 0, v1
         s_cbranch_scc1 L_lpok
         s_cbranch_vccnz L_lp
         L_lpok:""")
    stamp(8)
    for d in red[:2]:
        for r in range(16): A(f"v_add_f32_dpp v{64+r}, v{64+r}, v{64+r} {d} {dppf}")
    for r in range(8): A(f"v_cvt_pk_bf16_f32 v{72+r}, v{64+r}, v{72+r}")
    for r in range(8): A(f"v_lshlrev_b32 v{64+r}, 16, v{72+r}")
    for r in range(8): A(f"v_and_b32 v{72+r}, 0xffff0000, v{72+r}")
    for r in range(8): A(f"v_mul_f32 v{64+r}, 0x{f2u(-LOG2E):08x}, v{64+r}")
    for r in range(8): A(f"v_exp_f32 v{64+r}, v{64+r}")
    for r in range(8): A(f"v_add_f32 v{64+r}, 1.0, v{64+r}")
    for r in range(8): A(f"v_rcp_f32 v{64+r}, v{64+r}")
    for r in range(8): A(f"v_cvt_pk_bf16_f32 v{64+r}, v{64+r}, v{64+r}")
    for r in range(8): A(f"v_and_b32 v{64+r}, 0xffff0000, v{64+r}")
    for r in range(8): A(f"v_mul_f32 v{64+r}, v{64+r}, v{72+r}")
    for r in range(4): A(f"v_cvt_pk_bf16_f32 v{64+r}, v{64+2*r}, v{65+2*r}")
    A(f"""v_lshlrev_b32 v1, 7, v14
          v_lshl_add_u32 v1, v13, 3, v1
          s_mov_b32 exec_lo, 0
          s_mov_b32 exec_hi, 0xffff0000
          v_mov_b32 v66, 0
          v_mov_b32 v67, 0
          s_mov_b32 exec_lo, 0x11111111
          s_mov_b32 exec_hi, 0x11111111
          ds_write_b64 v1, v[64:65] offset:{L_H}
          ds_write_b64 v1, v[66:67] offset:{L_H+64}
          s_mov_b64 exec, -1
          v_mov_b32 v48, v40
          v_mov_b32 v49, v42""")
    allred("v_max_f32", [48, 49], full=False)
    A("""v_sub_f32 v36, v40, v48
         v_sub_f32 v37, v42, v49
         v_exp_f32 v36, v36
         v_exp_f32 v37, v37
         s_nop 0""")
    allred("v_add_f32", [36, 37], full=False)
    A(f"""v_log_f32 v36, v36
          v_log_f32 v37, v37
          v_mov_b32 v50, 2
          v_add_f32 v48, v48, v36
          v_add_f32 v49, v49, v37
          s_mov_b64 exec, 1
          ds_write_b64 v30, v[48:49] offset:{L_LS}
          s_waitcnt lgkmcnt(0)
          ds_write_b32 v30, v50 offset:{L_F}
          s_waitcnt lgkmcnt(0)""")
    stamp(9)
    dump(10)
    A("L_end:")
    A("s_endpgm")
    L.append('.section .rodata,"a"')
    L.append(".p2align 6")
    L.append(f".amdhsa_kernel {KNAME}")
    L.append("""  .amdhsa_next_free_vgpr 212
  .amdhsa_next_free_sgpr 102
  .amdhsa_accum_offset 212
  .amdhsa_group_segment_fixed_size 0
  .amdhsa_kernarg_size 104
  .amdhsa_user_sgpr_count 2
  .amdhsa_user_sgpr_kernarg_segment_ptr 1
  .amdhsa_system_sgpr_workgroup_id_x 1
.end_amdhsa_kernel""")
    return "\n".join(L) + "\n"

if __name__ == "__main__":
    kw = json.loads(sys.argv[1]) if len(sys.argv) > 1 else {}
    sys.stdout.write(gen(**kw))
```

```python
import sys, json, struct
KNAME = "gated_mix__gqa_block_cached__glu_gated_glu__decode_kernel"

HEADER = """; Kernarg layout for this problem (104 bytes, ptrs only, base s[0:1]):
;   offset   0: d_in[0] A_x  shape=(2, 1, 448) dtype=bfloat16
;   offset   8: d_in[1] A_k_cache  shape=(2, 8, 16384, 256) dtype=bfloat16
;   offset  16: d_in[2] A_v_cache  shape=(2, 8, 16384, 256) dtype=bfloat16
;   offset  24: d_in[3] A_wq  shape=(448, 4096) dtype=bfloat16
;   offset  32: d_in[4] A_wo  shape=(4096, 448) dtype=bfloat16
"""

W_CNT   = 0x70000
W_Q     = 0x8000
W_G     = 0x30000
W_A     = 0x50000
W_T     = 0x61000
W_O     = 0x80000
W_S     = 0x100000
W_DBG   = 0x400000
W_SIZE  = 0x800000

L_X   = 0
L_W   = 2048
L_Q   = 16384
L_F   = 17408
L_GT  = 17536
L_LS  = 17600
L_H   = 17664
L_P   = 18432
L_R   = 26624
L_S   = 30720
L_WW  = 34816
L_WD  = 51200
LDS_SIZE = 59392

NH, NS = 10, 12
LOG2E = 1.4426950408889634
def f2u(x): return struct.unpack("<I", struct.pack("<f", x))[0]
dppf = "row_mask:0xf bank_mask:0xf"
red = ("quad_perm:[1,0,3,2]", "quad_perm:[2,3,0,1]", "row_half_mirror")

def gen(order="q w0 w1 h p t0 t1 t2 x0 x1 x2 t3", PT=3, HT=8, odd="37", tlate=4, dbg=0, spin=200000, ksplit=0, astr=128, cmt=0, oddv=None, xe=0, vpad=0, ptouch=0, cs=512, one=1, rmap=1, word=0, pk=2, bdep=0, bsl=3, ms=2, probe=-1, pmul=4):
    oddc = [odd]
    NB, WG = 4, 4
    pos = {n: 11 + i for i, n in enumerate(order.split())}
    dorder = [n for n in order.split() if n not in ('q', 'h', 't3')]
    assert dorder[3:6] == ['t0', 't1', 't2'] and PT <= 4
    U = PT * 16
    SV = 16 - PT
    L = []
    def A(s):
        for line in s.split("\n"):
            line = line.strip()
            if line: L.append(("" if line.endswith(":") else "    ") + line)
    def C(s): L.append("; " + s)
    instream = [False]
    def stamp(k):
        if probe >= 0:
            if k == 0 or (k == probe and instream[0]): A(f"s_memrealtime s[{72+2*k}:{73+2*k}]")
            return
        if dbg == 4 and (k not in (0, 4, 9) or (k and not instream[0])): return
        if dbg: A(f"s_memrealtime s[{72+2*k}:{73+2*k}]")
    def dump(n):
        if not dbg: return
        A("s_waitcnt lgkmcnt(0)")
        A("s_mul_i32 s60, s2, 5\ns_add_u32 s60, s60, s3\ns_lshl_b32 s60, s60, 6")
        A(f"s_add_u32 s60, s60, {W_DBG}\ns_mov_b64 exec, 1\nv_mov_b32 v1, 0")
        for k in range(n):
            A(f"v_mov_b32 v2, s{72+2*k}\nbuffer_store_dword v2, v1, s[40:43], s60 offen offset:{4*k}")
        A("s_getreg_b32 s61, hwreg(HW_REG_XCC_ID)\nv_mov_b32 v2, s61\nbuffer_store_dword v2, v1, s[40:43], s60 offen offset:60")
        A("v_mov_b32 v2, s46\nbuffer_store_dword v2, v1, s[40:43], s60 offen offset:56")
    def dep(dst, base, src, names, P, tmp="s48"):
        i = 0
        while i < len(names):
            j = i
            while j + 1 < len(names) and P[names[j + 1]] == P[names[j]] + 1: j += 1
            A(f"s_bfe_u32 {tmp}, {src}, 0x{((j - i + 1) << 16) | i:x}")
            A(f"s_lshl_b32 {tmp}, {tmp}, {P[names[i]]}")
            A(f"s_add_u32 {dst}, {base}, {tmp}")
            base = dst; i = j + 1
    TN = ["t0", "t1", "t2", "t3"]
    def tconst(t): return sum(((t >> i) & 1) << pos[TN[i]] for i in range(4))
    def ldswait(lab, off, val, vz, vt, sleep=0):
        A(f"s_mov_b32 s59, {spin*8}\n{lab}:")
        if sleep: A(f"s_sleep {sleep}")
        A(f"""ds_read_b32 v{vt}, v{vz} offset:{off}
              s_sub_u32 s59, s59, 1
              s_cbranch_scc1 {lab}x
              s_waitcnt lgkmcnt(0)
              v_cmp_gt_u32 vcc, {val}, v{vt}
              s_cbranch_vccnz {lab}
              {lab}x:""")
    def consumer(sR, sC):
        A(f"""s_lshr_b32 {sC}, s2, 3
              s_min_u32 {sC}, {sC}, 27
              s_mul_i32 {sR}, {sC}, 37
              s_lshr_b32 {sR}, {sR}, 8
              s_mul_i32 s48, {sR}, 7
              s_sub_u32 {sC}, {sC}, s48
              s_and_b32 s48, s2, 7""")
        if rmap == 0: A(f"s_lshl_b32 {sR}, {sR}, 3")
        else: A("s_lshl_b32 s48, s48, 2")
        A(f"s_add_u32 {sR}, {sR}, s48")
    assert all((k * 37) >> 8 == k // 7 for k in range(28))
    def page(): L.append(f".fill ((({KNAME} - .) & 4095) >> 2), 4, 0xbf810000")

    L.append(HEADER.rstrip())
    L.append(f"; @launch grid=(256,1,1) block=(320,1,1) lds={LDS_SIZE}")
    L.append('.amdgcn_target "amdgcn-amd-amdhsa--gfx950"')
    L.append(".text")
    L.append(f".globl {KNAME}")
    L.append(".p2align 12")
    L.append(f".fill {(4096-768)//4}, 4, 0xbf810000")
    L.append(".p2align 8")
    L.append(f".type {KNAME},@function")
    L.append(f"{KNAME}:")
    C("---- entry: v0 lane, v2 = lane>>4, v3 = lane&15, s3 wave; s30 = wg&7, s31 = b*2 + (wg>>3&1), s64 kv head, s65 = s64*8+s30, s66 = b*16 + split")
    A("s_cmp_ge_u32 s2, 256")
    A("s_cbranch_scc1 L_end")
    stamp(0)
    if dbg:
        for k in range(1, 12): A(f"s_mov_b32 s{72+2*k}, 0")
    A(f"""s_load_dwordx16 s[4:19], s[0:1], 0
          s_load_dwordx8 s[20:27], s[0:1], 64
          s_load_dwordx2 s[28:29], s[0:1], 96
          v_lshrrev_b32 v1, 6, v0
          v_and_b32 v0, 63, v0
          v_readfirstlane_b32 s3, v1
          v_lshrrev_b32 v2, 4, v0
          v_and_b32 v3, 15, v0
          s_mov_b32 s35, 0x20000
          s_mov_b32 s39, 0x20000
          s_mov_b32 s43, 0x20000
          s_mov_b32 s42, {W_SIZE}
          s_and_b32 s30, s2, 7
          s_lshr_b32 s31, s2, 7
          s_lshl_b32 s66, s31, 4
          s_lshl_b32 s31, s31, 1
          s_bfe_u32 s64, s2, 0x10003
          s_add_u32 s31, s31, s64
          s_and_b32 s64, s2, 15
          s_add_u32 s66, s66, s64
          s_bfe_u32 s64, s2, 0x30004
          s_lshl_b32 s65, s64, 3
          s_add_u32 s65, s65, s30
          s_cmp_eq_u32 s3, 0
          s_cbranch_scc0 L_stream""")
    C("---- helper wave, first part: x and a 112 x 64 tile of wq to LDS, gate_w to registers")
    A(f"""v_mov_b32 v1, 0
          v_lshlrev_b32 v4, 2, v3
          v_lshrrev_b32 v13, 3, v0
          ds_write_b32 v4, v1 offset:{L_F}
          v_and_b32 v12, 6, v13
          v_xor_b32 v12, v12, v0
          v_and_b32 v12, 7, v12
          v_lshlrev_b32 v12, 4, v12
          v_lshl_add_u32 v4, v13, 13, v12
          v_lshlrev_b32 v5, 4, v0
          v_and_b32 v107, 31, v0
          v_lshlrev_b32 v107, 5, v107
          s_mul_i32 s48, s31, {112*8192}
          s_lshl_b32 s44, s65, 7
          s_add_u32 s48, s48, s44
          s_mov_b32 s34, 1792
          s_mov_b32 s38, 3670016
          s_mov_b32 s70, 896
          s_mov_b32 s71, 0x20000
          s_mov_b32 m0, {L_X}
          s_waitcnt lgkmcnt(0)
          s_mov_b32 s36, s10
          s_mov_b32 s37, s11
          s_mov_b32 s32, s4
          s_mov_b32 s33, s5
          s_mov_b32 s68, s22
          s_mov_b32 s69, s23
          buffer_load_dwordx4 v5, s[32:35], 0 offen lds
          buffer_load_dwordx4 v5, s[32:35], 0 offen offset:1024 lds""")
    def tile_dma(lab, rowb):
        A(f"""s_mov_b32 m0, {L_W}
              s_nop 0
              {lab}:
              buffer_load_dwordx4 v4, s[36:39], s48 offen nt lds
              s_add_u32 m0, m0, 1024
              s_add_u32 s48, s48, {8*rowb}
              s_cmp_lt_u32 m0, {L_W + 14*1024}
              s_cbranch_scc1 {lab}""")
    tile_dma("L_qdma", 8192)
    A("""buffer_load_dwordx4 v[108:111], v107, s[68:71], 0 offen
         buffer_load_dwordx4 v[112:115], v107, s[68:71], 0 offen offset:16
         s_barrier
         s_load_dword s46, s[28:29], 0
         s_mov_b32 s40, s28
         s_mov_b32 s41, s29
         s_branch L_helper""")

    VZ, VSA, VQ, VMASK, VACC = 6, 7, 8, 16, 20
    VM, VMC, VGS = 28, 29, 30
    VS = VA = 32
    VT = 48
    VSC = 60
    VB = 64
    VW = VB + 64
    HR = VB + 96
    VX = 192
    VO = 208
    X = lambda k: VX + k
    def buf(n): return VB + 32 * n
    C("---- streaming waves: s44 = wave-1, s47 group base, s38 own base, s45 tile offset")
    A("L_stream:")
    instream[0] = True
    A(f"""v_lshrrev_b32 v{VO}, 2, v3
          v_lshlrev_b32 v{VO}, 9, v{VO}
          v_lshl_add_u32 v{VO}, v2, 6, v{VO}
          v_and_b32 v6, 3, v3
          v_lshl_add_u32 v{VO}, v6, 4, v{VO}
          s_sub_u32 s44, s3, 1
          s_lshr_b32 s47, s2, 4
          s_lshl_b32 s47, s47, 23
          s_mov_b32 s34, 0x8000000""")
    def quads():
        A(f"""v_add_u32 v{VO+1}, {1 << pos['q']}, v{VO}
              v_add_u32 v{VO+2}, {1 << pos['h']}, v{VO}
              v_add_u32 v{VO+3}, {(1 << pos['h']) + (1 << pos['q'])}, v{VO}""")
    quads()
    dep("s45", "s47", "s2", ["x0", "x1", "x2", "p"], pos)
    dep("s45", "s45", "s44", ["w0", "w1"], pos)
    C("each wave branches through one later code line while the kernel arguments are in flight (instruction prefetch)")
    A("""s_cmp_eq_u32 s3, 1
         s_cbranch_scc1 L_tch1
         s_cmp_eq_u32 s3, 2
         s_cbranch_scc1 L_tch2
         s_cmp_eq_u32 s3, 3
         s_cbranch_scc1 L_tch3
         s_branch L_tch4
         L_tback:
         s_waitcnt lgkmcnt(0)
         s_mov_b32 s32, s6
         s_mov_b32 s33, s7
         s_barrier""")
    def ld(n, m): A(f"buffer_load_dwordx4 v[{buf(n)+4*m}:{buf(n)+4*m+3}], v{VO + (m >> 1)}, s[32:35], s45 offen offset:{256*(m & 1)} nt")
    def quad(n, k, extra=0, wait=True):
        for m in (2 * k, 2 * k + 1):
            if (m % 2 == 0 and wait) or str(m) in oddc[0]: A(f"s_waitcnt vmcnt({WG + (extra if m <= WG else 0)})")
            ld(n, m)
    for m in range(6): ld(0, m)
    C("constants: s[36:37] V, s[4:7] wo, s[8:11] w_down, s12/s13 their offsets, s[14:15] lane mask, s[50:51] ticket counter, s[24:25] arrival counter")
    A(f"""s_mov_b32 s38, s45
          s_load_dword s67, s[28:29], 0
          s_mov_b32 s36, s8
          s_mov_b32 s37, s9
          s_mov_b32 s40, s28
          s_mov_b32 s41, s29
          s_lshr_b32 s58, s2, 4
          s_lshl_b32 s48, s58, 2
          s_lshl_b32 s58, s58, 15
          s_add_u32 s58, s58, {W_S}
          s_lshr_b32 s27, s2, 1
          s_add_u32 s27, s44, s27
          s_and_b32 s27, s27, 3
          s_add_u32 s48, s48, s27
          s_lshl_b32 s27, s27, 7
          s_mul_i32 s48, s48, {cs}
          s_add_u32 s48, s48, {W_CNT}
          s_add_u32 s50, s28, s48
          s_addc_u32 s51, s29, 0
          s_mov_b32 s46, 0
          s_mov_b32 s52, 0x{f2u(LOG2E/16):08x}
          s_mov_b32 s53, 0
          s_mov_b32 s57, 0
          s_mov_b32 s4, s12
          s_mov_b32 s5, s13
          s_mov_b32 s6, 3670016
          s_mov_b32 s7, 0x20000
          s_mov_b32 s8, s20
          s_mov_b32 s9, s21
          s_mov_b32 s10, 1605632
          s_mov_b32 s11, 0x20000""")
    consumer("s14", "s15")
    A(f"""s_mul_i32 s12, s14, {128*896}
          s_lshl_b32 s48, s15, 7
          s_add_u32 s12, s12, s48
          s_mul_i32 s13, s14, {56*896}
          s_add_u32 s13, s13, s48
          v_lshrrev_b32 v1, 3, v0
          v_and_b32 v6, 6, v1
          v_xor_b32 v6, v6, v0
          v_and_b32 v6, 7, v6
          v_lshlrev_b32 v6, 4, v6
          v_mul_u32_u24 v{X(1)}, 896, v1
          v_add_u32 v{X(1)}, v{X(1)}, v6
          v_lshrrev_b32 v7, 5, v0
          v_mul_u32_u24 v7, {4*896}, v7
          v_add_u32 v{X(0)}, v{X(1)}, v7
          v_and_b32 v6, 1, v3
          v_cmp_eq_u32 vcc, 1, v6
          v_mov_b32 v7, 0xffff
          v_mov_b32 v{VT}, 0xffff0000
          v_cndmask_b32 v7, v7, v{VT}, vcc
          v_bfe_u32 v6, v3, 1, 2""")
    for r in range(4):
        A(f"""v_cmp_eq_u32 vcc, {r}, v6
              v_mov_b32 v{VACC+2*r}, 0
              v_mov_b32 v{VACC+2*r+1}, 0
              v_cndmask_b32 v{VMASK+r}, 0, v7, vcc""")
    A(f"""v_mov_b32 v{VM}, 0xff7fffff
          v_mov_b32 v{VZ}, 0
          v_lshrrev_b32 v1, 3, v3
          v_lshlrev_b32 v{X(2)}, 9, v1
          v_lshl_add_u32 v{X(2)}, v2, 6, v{X(2)}
          v_and_b32 v{VT}, 3, v3
          v_lshl_add_u32 v{X(2)}, v{VT}, 4, v{X(2)}
          v_lshlrev_b32 v{X(3)}, 4, v0
          v_and_b32 v{VGS}, 0x38, v0
          s_lshl_b32 s48, s44, 6
          v_add_u32 v{VSA}, s48, v{VGS}
          v_lshrrev_b32 v{VT+2}, 1, v2
          v_and_b32 v{VT}, 1, v2
          v_and_b32 v{VT+1}, 7, v3
          v_lshlrev_b32 v{X(4)}, 15, v{VT+2}
          v_lshl_add_u32 v{X(4)}, v{VT}, 8, v{X(4)}
          v_lshl_add_u32 v{X(4)}, v3, 4, v{X(4)}
          s_lshl_b32 s16, s64, 16
          s_lshl_b32 s48, s66, 9
          s_add_u32 s16, s16, s48
          s_add_u32 s16, s16, {W_O}
          s_add_u32 s26, s16, 0x4000
          v_lshrrev_b32 v{X(5)}, 3, v0
          v_lshlrev_b32 v{X(5)}, 9, v{X(5)}
          v_lshl_add_u32 v{X(5)}, v{VT+1}, 4, v{X(5)}
          s_lshl_b32 s17, s14, 14
          s_lshl_b32 s48, s44, 7
          s_add_u32 s17, s17, s48
          s_add_u32 s17, s17, {W_O}
          s_add_u32 s66, s17, 0x1000
          s_add_u32 s65, s17, 0x2000
          s_add_u32 s31, s17, 0x3000
          v_lshlrev_b32 v{X(6)}, 7, v1
          v_lshl_add_u32 v{X(6)}, v2, 3, v{X(6)}
          v_lshlrev_b32 v{X(7)}, 3, v{VT+2}
          v_lshlrev_b32 v{X(8)}, 8, v{VT+2}
          v_lshl_add_u32 v{X(8)}, v{VT}, 2, v{X(8)}
          v_and_b32 v4, 3, v0
          v_lshl_add_u32 v{X(8)}, v4, 4, v{X(8)}
          v_bfe_u32 v4, v0, 2, 1
          v_lshl_add_u32 v{X(8)}, v4, 3, v{X(8)}
          s_lshl_b32 s48, s44, 6
          v_add_u32 v{X(8)}, s48, v{X(8)}
          v_lshlrev_b32 v{X(9)}, 8, v1
          v_lshl_add_u32 v{X(9)}, v2, 4, v{X(9)}
          v_mul_u32_u24 v{X(11)}, 896, v{VT+2}
          v_lshl_add_u32 v{X(11)}, v3, 1, v{X(11)}
          s_mov_b32 s60, 0x00800100
          s_mov_b32 s61, 0x00800100
          v_lshl_add_u32 v{X(10)}, v{VT+2}, 3, v{VT}
          v_mul_u32_u24 v{X(10)}, {astr}, v{X(10)}
          v_cndmask_b32 v4, v{VT+1}, 8, s[60:61]
          v_lshl_add_u32 v{X(10)}, v4, 2, v{X(10)}
          v_lshlrev_b32 v{X(12)}, 2, v1
          v_mov_b32 v{X(13)}, 0xffffff00
          v_mov_b32 v{X(14)}, 1
          v_mul_u32_u24 v{X(15)}, {cs}, v0
          v_lshrrev_b32 v4, 2, v0
          v_lshlrev_b32 v5, 7, v4
          v_and_b32 v{VT}, 3, v0
          v_lshl_add_u32 v5, v{VT}, 3, v5
          v_bfe_u32 v4, v4, 1, 2
          v_xor_b32 v4, s44, v4
          v_lshl_add_u32 v5, v4, 5, v5
          s_lshl_b32 s18, s15, 3
          s_add_u32 s18, s18, s44
          s_mul_i32 s18, s18, {2*astr}
          s_add_u32 s18, s18, {W_A}
          s_lshl_b32 s19, s15, 7
          s_lshl_b32 s48, s44, 5
          s_add_u32 s19, s19, s48
          s_mov_b32 s20, s24
          s_mov_b32 s21, s25
          s_mov_b32 s22, 1792
          s_mov_b32 s23, 0x20000
          s_mul_i32 s48, s14, {cs}
          s_add_u32 s48, s48, {W_CNT + cs//2}
          s_add_u32 s24, s28, s48
          s_addc_u32 s25, s29, 0
          s_mul_i32 s30, s64, {4*cs}
          s_add_u32 s30, s30, {W_CNT + cs//2}
          s_branch L_pro1
          L_tch3:
          s_branch L_tback
          L_pro1:""")
    quad(0, 3)
    stamp(1)
    for n in range(1, NB):
        A(f"s_add_u32 s45, s38, {tconst(n)}")
        for k in range(4): quad(n, k)
    stamp(2)
    ldswait("L_qw", L_F, 1, VZ, VT)
    A(f"ds_read_b128 v[{VQ}:{VQ+3}], v{X(2)} offset:{L_Q}")
    A(f"ds_read_b128 v[{VQ+4}:{VQ+7}], v{X(2)} offset:{L_Q+256}")
    stamp(3)
    A("""s_add_u32 s67, s67, 0x01010101
         s_and_b32 s68, s67, 0xff
         s_bfe_u32 s69, s67, 0x80008
         s_bfe_u32 s70, s67, 0x80010
         s_lshr_b32 s71, s67, 24
         s_waitcnt lgkmcnt(0)""")
    C("---- K phase: 16 tiles of 16 keys; s46 = first tile of the trip, s49 = next tile to load")
    def qk_mfma(n, ks):
        b = buf(n)
        for kk in ks:
            A(f"v_mfma_f32_16x16x32_bf16 v[{VS+4*kk}:{VS+4*kk+3}], v[{b+8*kk}:{b+8*kk+3}], v[{VQ}:{VQ+3}], 0")
        for kk in ks:
            A(f"v_mfma_f32_16x16x32_bf16 v[{VS+4*kk}:{VS+4*kk+3}], v[{b+8*kk+4}:{b+8*kk+7}], v[{VQ+4}:{VQ+7}], v[{VS+4*kk}:{VS+4*kk+3}]")
    def qk_red(n):
        for kk in range(4): A(f"v_mov_b32_dpp v{VT+kk}, v{VS+4*kk} quad_perm:[0,0,0,0] {dppf}")
        for c in range(1, 4):
            for kk in range(4): A(f"v_add_f32_dpp v{VT+kk}, v{VS+4*kk+c}, v{VT+kk} quad_perm:[{c},{c},{c},{c}] {dppf}")
        A(f"""v_cvt_pk_bf16_f32 v{VT+4}, v{VT}, v{VT+1}
              v_cvt_pk_bf16_f32 v{VT+5}, v{VT+2}, v{VT+3}
              v_max3_f32 v{VM}, v{VM}, v{VT}, v{VT+1}
              ds_write_b64 v{VSA}, v[{VT+4}:{VT+5}] offset:{L_S + 256*n}
              v_max3_f32 v{VM}, v{VM}, v{VT+2}, v{VT+3}""")
    for n in range(NB):
        nn = (n + 1) % NB
        A(f"""L_k{n}:
              s_cmp_eq_u32 s46, 0
              s_cbranch_scc1 {f"L_kc{n}" if n else "L_ka0"}""")
        if n == NB - 1:
            A("""s_cmp_eq_u32 s46, 12
                 s_cbranch_scc1 L_ktov
                 L_kgo:""")
        dep("s45", "s38", "s49", TN, pos)
        A("s_add_u32 s49, s49, 1")
        quad(nn, 0); quad(nn, 1)
        if n == NB - 1: A("L_kc3:")
        quad(nn, 2)
        if ksplit:
            If = n < NB - 1
            if If: A(f"s_cmp_eq_u32 s46, 0\nL_ka{n}:")
            qk_mfma(n, range(4))
            if If: A(f"s_cbranch_scc1 L_kb{n}")
            quad(nn, 3)
            if If: A(f"L_kb{n}:")
            A("s_nop 3" if If else "s_nop 1")
        else:
            quad(nn, 3)
            A(f"L_ka{n}:")
            qk_mfma(n, range(4))
            A("s_nop 4")
        qk_red(n)
        if n == 1: A("s_branch L_k2\nL_tch4:\ns_branch L_tback")
    A(f"""v_add_u32 v{VSA}, {256*NB}, v{VSA}
          s_add_u32 s46, s46, {NB}
          s_cmp_lt_u32 s46, 16
          s_cbranch_scc1 L_k0""")
    C("---- K -> V: maximum over this wave's 256 keys, first scores")
    A(f"""s_mov_b64 exec, 1
          ds_add_u32 v{VZ}, v{X(14)} offset:{L_F+8}
          s_mov_b64 exec, -1
          v_subrev_u32 v{VSA}, {256*SV}, v{VSA}
          v_mov_b32 v{VT}, v{VM}
          ds_read_b64 v[{VSC}:{VSC+1}], v{VSA} offset:{L_S}
          s_mov_b32 s46, 1
          v_permlane16_swap_b32 v{VM}, v{VT}
          v_max_f32 v{VM}, v{VM}, v{VT}
          v_mov_b32 v{VT}, v{VM}
          s_nop 1
          v_permlane32_swap_b32 v{VM}, v{VT}
          v_max_f32 v{VM}, v{VM}, v{VT}
          v_cvt_pk_bf16_f32 v{VM}, v{VM}, v{VM}
          v_and_b32 v{VM}, 0xffff0000, v{VM}
          v_mul_f32 v{VMC}, s52, v{VM}""")
    stamp(10)
    A("s_branch L_v0")
    for n in (1, 2):
        A(f"L_kc{n}:")
        if n == 1: A(f"s_add_u32 s45, s38, {tconst(4)}\ns_mov_b32 s49, 5\ns_cmp_eq_u32 s46, 0")
        quad(0, n - 1)
        A(f"s_branch L_ka{n}")
    A(f"""L_ktov:
          s_mov_b32 s32, s36
          s_mov_b32 s33, s37
          s_mov_b32 s49, {PT}
          v_lshlrev_b32 v{VO}, 9, v2
          v_lshl_add_u32 v{VO}, v3, 4, v{VO}""")
    quads()
    A("s_branch L_kgo")
    page()
    A("L_tch5:\ns_branch L_tch6")
    if oddv is not None: oddc[0] = oddv
    def probs(sc):
        A(f"""v_lshlrev_b32 v{VT}, 16, v{sc}
              v_and_b32 v{VT+1}, 0xffff0000, v{sc}
              v_lshlrev_b32 v{VT+2}, 16, v{sc+1}
              v_and_b32 v{VT+3}, 0xffff0000, v{sc+1}""")
        for kk in range(4): A(f"v_fma_f32 v{VT+kk}, v{VT+kk}, s52, -v{VMC}")
        for kk in range(4): A(f"v_exp_f32 v{VT+kk}, v{VT+kk}")
        for kk in range(4): A(f"v_cvt_pk_bf16_f32 v{VT+kk}, v{VT+kk}, v{VT+kk}")
        for kk in range(4):
            for r in range(4): A(f"v_and_b32 v{VA+4*kk+r}, v{VT+kk}, v{VMASK+r}")
    def pv(n, ks=range(4)):
        b = buf(n)
        for kk in ks:
            for hf in range(2):
                A(f"v_mfma_f32_16x16x32_bf16 v[{VACC+4*hf}:{VACC+4*hf+3}], v[{VA+4*kk}:{VA+4*kk+3}], v[{b+8*kk+4*hf}:{b+8*kk+4*hf+3}], v[{VACC+4*hf}:{VACC+4*hf+3}]")
    C("---- V phase: s46 = tiles started, s53 = ticket, s57 = 1 when the tile being loaded is a half tile")
    for n in range(2):
        sc, scn = VSC + 2 * n, VSC + 2 * (1 - n)
        A(f"""L_v{n}:
              s_waitcnt lgkmcnt(0)
              s_cmp_lt_u32 s46, {SV}
              s_cbranch_scc0 L_vd{n}
              v_add_u32 v{VSA}, 256, v{VSA}""")
        dep("s45", "s38", "s49", TN, pos)
        A(f"""s_add_u32 s49, s49, 1
              ds_read_b64 v[{scn}:{scn+1}], v{VSA} offset:{L_S}""")
        quad(1 - n, 0); quad(1 - n, 1)
        A(f"""L_vb{n}:
              s_add_u32 s46, s46, 1
              s_cmp_lt_u32 s46, {SV}
              s_cbranch_scc1 L_noat{n}""")
        if n == SV % 2:
            A(f"""s_cmp_eq_u32 s46, {SV}
                  s_cbranch_scc1 L_norm
                  L_normx:""")
        A(f"""s_mov_b32 s53, 1
              s_atomic_add s53, s[50:51], 0 glc
              L_noat{n}:""")
        probs(sc)
        for _ in range(vpad): A(f"v_max_f32 v{VT+4}, v{VT+4}, v{VT+4}")
        if HT: A(f"s_cmp_eq_u32 s57, 1\ns_cbranch_scc1 L_vh{n}")
        A(f"""s_waitcnt vmcnt({WG + 1})
              s_cmp_le_u32 s46, {SV}
              s_cbranch_scc0 L_vc{n}
              s_waitcnt vmcnt({WG})
              L_vc{n}:""")
        quad(1 - n, 2, wait=False); quad(1 - n, 3)
        if n == (SV - tlate) % 2:
            A(f"""s_cmp_eq_u32 s46, {SV - tlate}
                  s_cbranch_scc0 L_vp{n}
                  ds_write_b32 v{VZ}, v{X(14)} offset:{L_F+20}""")
        A(f"L_vp{n}:")
        pv(n)
        if n == 1: A("s_branch L_v0")
    A("L_tch6:\ns_branch L_tch7")
    C("before the first ticket: switch the accumulators to the row's global log-sum-exp, fetch the GLU operands")
    A("L_norm:")
    ldswait("L_f2w", L_F, 2, VZ, VT + 7)
    A(f"ds_read_b32 v{VT+4}, v{X(12)} offset:{L_LS}")
    for k in range(4): A(f"ds_read_b64 v[{HR+4+2*k}:{HR+5+2*k}], v{X(6)} offset:{L_H + 32*k}")
    A(f"""ds_read_b64 v[{HR+2}:{HR+3}], v{X(7)} offset:{L_GT}
          s_waitcnt lgkmcnt(0)
          v_sub_f32 v{VT+5}, v{VMC}, v{VT+4}
          v_exp_f32 v{VT+5}, v{VT+5}
          v_mov_b32 v{VMC}, v{VT+4}
          v_mov_b32 v{VT+6}, v{VT+5}
          s_nop 1
          v_mov_b32_dpp v{VT+6}, v{VT+5} row_ror:8 row_mask:0x3 bank_mask:0xc
          s_nop 1
          v_mov_b32_dpp v{VT+6}, v{VT+5} row_ror:8 row_mask:0xc bank_mask:0x3""")
    for r in range(8): A(f"v_mul_f32 v{VACC+r}, v{VACC+r}, v{VT+6}")
    A("s_branch L_normx")
    for n in range(2):
        scn = VSC + 2 * (1 - n)
        A(f"""L_vd{n}:
              s_cmp_ge_u32 s53, {U + HT}
              s_cbranch_scc1 L_dry{n}""")
        if HT:
            assert U - HT >= 4
            A(f"""s_sub_u32 s56, s53, {U - HT}
                  s_cselect_b32 s56, 0, s56
                  s_cselect_b32 s57, 0, 1
                  s_add_u32 s54, s56, 1
                  s_lshr_b32 s54, s54, 1
                  s_sub_u32 s53, s53, s54
                  s_and_b32 s56, s56, 1""")
        A(f"""s_cmp_ge_u32 s53, {8*PT}
              s_cselect_b32 s55, {8*(8-PT)}, 0
              s_add_u32 s53, s53, s27
              s_add_u32 s53, s53, s55
              s_lshl_b32 s55, s53, 6
              s_add_u32 s55, s55, s58""")
        dep("s45", "s47", "s53", dorder, pos)
        if HT:
            A(f"""s_cmp_eq_u32 s57, 0
                  s_cbranch_scc1 L_vf{n}
                  s_lshl_b32 s54, s56, 2
                  s_add_u32 s55, s55, s54
                  s_lshl_b32 s54, s56, {pos['h']}
                  s_add_u32 s45, s45, s54
                  s_sub_u32 s45, s45, {1 << pos['h']}
                  v_mov_b32 v{scn}, 0xff80ff80
                  s_waitcnt vmcnt(4)
                  buffer_load_dword v{scn+1}, v{VGS}, s[40:43], s55 offen sc1""")
            ld(1 - n, 4); ld(1 - n, 5)
            A(f"""s_branch L_vb{n}
                  L_vh{n}:
                  s_waitcnt vmcnt(5)""")
            ld(1 - n, 6); ld(1 - n, 7)
            A(f"""s_waitcnt vmcnt(5)
                  s_branch L_vp{n}
                  L_vf{n}:""")
        A(f"""s_waitcnt vmcnt({WG})
              buffer_load_dwordx2 v[{scn}:{scn+1}], v{VGS}, s[40:43], s55 offen sc1""")
        quad(1 - n, 0, 1, wait=False); quad(1 - n, 1, 1)
        A(f"s_branch L_vb{n}")
    A("L_tch7:\ns_branch L_tch10")
    C("---- last tile of this wave")
    RD = [VT + 4, VT + 8, HR + 16, HR + 20, HR + 24, HR + 28]
    def rdpark():
        A(f"ds_read_b32 v{VT}, v{VZ} offset:{L_F+16}")
        for k in range(3):
            for hf in range(2):
                A(f"ds_read_b128 v[{RD[2*k+hf]}:{RD[2*k+hf]+3}], v{X(3)} offset:{L_P + 2048*k + 1024*hf}")
    def pk_add(d, a_, b_):
        for r in (0, 2): A(f"v_pk_add_f32 v[{d+r}:{d+r+1}], v[{a_+r}:{a_+r+1}], v[{b_+r}:{b_+r+1}]")
    def addpark():
        A("s_waitcnt lgkmcnt(2)")
        for hf in range(2): pk_add(RD[hf], RD[hf], RD[2+hf])
        A("s_waitcnt lgkmcnt(0)")
        for hf in range(2): pk_add(RD[hf], RD[hf], RD[4+hf])
        for hf in range(2): pk_add(VACC + 4*hf, VACC + 4*hf, RD[hf])
    k0 = (0, 1) if ms == 2 else ()
    k1 = (2,) if ms == 2 else (0, 1)
    k2 = (3,) if ms == 2 else (2, 3)
    for n in range(2):
        A(f"L_dry{n}:")
        if HT: A(f"""s_cmp_eq_u32 s57, 0
                     s_cbranch_scc1 L_dw{n}
                     s_waitcnt vmcnt(4)
                     L_dw{n}:""")
        A("s_waitcnt vmcnt(8)")
        probs(VSC + 2 * n)
        A(f"s_mov_b32 s59, {spin}\ns_waitcnt vmcnt(4)")
        pv(n, k0)
        C("arrival k at the last quad: waves 0..2 will park their partial in LDS slot k; wave 3 announces, adds them up and publishes")
        A(f"""s_mov_b64 exec, 1
              s_waitcnt vmcnt({ms})
              ds_add_rtn_u32 v{VT+1}, v{VZ}, v{X(14)} offset:{L_F+12}
              s_mov_b64 exec, -1""")
        pv(n, k1)
        rdpark()
        A(f"""s_waitcnt lgkmcnt(7)
              v_readfirstlane_b32 s54, v{VT+1}
              s_cmp_eq_u32 s54, 3
              s_cbranch_scc0 L_nr{n}
              s_mov_b64 exec, 15
              buffer_atomic_add v{X(14)}, v{X(15)}, s[40:43], s30 offen sc1
              s_mov_b64 exec, -1
              s_waitcnt lgkmcnt(6)
              v_cmp_gt_u32 vcc, 3, v{VT}
              s_cbranch_vccnz L_na{n}""")
        addpark()
        A(f"L_na{n}:\ns_waitcnt vmcnt(1)")
        stamp(4)
        A("s_nop 0")
        pv(n, k2)
        A(f"""s_cbranch_vccnz L_fin
              s_nop 4
              s_branch L_pub
              L_nr{n}:
              s_waitcnt vmcnt(0)""")
        stamp(4)
        pv(n, k2)
        if n == 0: A("s_branch L_park\nL_tch10:\ns_branch L_tch8")
    A(f"""L_park:
          s_nop 5
          s_lshl_b32 s54, s54, 11
          v_add_u32 v{VT+1}, s54, v{X(3)}
          ds_write_b128 v{VT+1}, v[{VACC}:{VACC+3}] offset:{L_P}
          ds_write_b128 v{VT+1}, v[{VACC+4}:{VACC+7}] offset:{L_P+1024}
          s_mov_b64 exec, 1
          ds_add_u32 v{VZ}, v{X(14)} offset:{L_F+16}
          s_mov_b64 exec, -1
          s_cmp_ge_u32 s2, 224
          s_cbranch_scc1 L_sdone""")
    C("the three early waves bring the 128 x 64 tile of wo and the rows of w_down to LDS, eight loads each")
    wd_k = 0 if word == 0 else 2
    A(f"""s_mov_b32 s55, s54
          s_cmp_eq_u32 s54, {wd_k << 11}
          s_cbranch_scc1 L_wd
          s_cmp_eq_u32 s54, {1 << 11}
          s_cselect_b32 s48, {4*896}, 0
          s_cselect_b32 s54, 8192, 0
          s_add_u32 s12, s12, s48
          s_add_u32 m0, s54, {L_WW}
          s_add_u32 s54, s54, {L_WW + 8192}
          L_wol:
          buffer_load_dwordx4 v{X(0)}, s[4:7], s12 offen nt lds
          s_add_u32 m0, m0, 1024
          s_add_u32 s12, s12, {16*896}
          s_cmp_lt_u32 m0, s54
          s_cbranch_scc1 L_wol
          s_branch L_wx
          L_wd:
          s_mov_b32 m0, {L_WD}
          s_nop 0
          L_wdl:
          buffer_load_dwordx4 v{X(1)}, s[8:11], s13 offen nt lds
          s_add_u32 m0, m0, 1024
          s_add_u32 s13, s13, {8*896}
          s_cmp_lt_u32 m0, {L_WD + 8192}
          s_cbranch_scc1 L_wdl
          L_wx:
          s_cmp_eq_u32 s55, {pk << 11}
          s_cbranch_scc1 L_bw0
          s_branch L_bwx
          L_tch8:
          s_branch L_tch9
          L_fin:""")
    rdpark()
    A(f"""s_sub_u32 s59, s59, 1
          s_cbranch_scc1 L_finx
          s_waitcnt lgkmcnt(6)
          v_cmp_gt_u32 vcc, 3, v{VT}
          s_cbranch_vccnz L_fin
          L_finx:""")
    addpark()
    A("L_pub:")
    for hf in range(2):
        for r in range(4): A(f"v_and_or_b32 v{VACC+4*hf+r}, v{VACC+4*hf+r}, v{X(13)}, s{68+r}")
        A(f"buffer_store_dwordx4 v[{VACC+4*hf}:{VACC+4*hf+3}], v{X(4)}, s[40:43], {'s26' if hf else 's16'} offen sc1")
    stamp(5)
    C("one wave waits until the 32 producers of this workgroup's row block have announced")
    A("s_cmp_ge_u32 s2, 224\ns_cbranch_scc1 L_sdone")
    if pk != 3: A("s_branch L_bwx")
    A("L_bw0:")
    if not bdep:
        A(f"""s_mov_b32 s59, {spin}
              L_bw:
              s_mov_b32 s54, 0
              s_atomic_add s54, s[24:25], 0 glc
              s_sub_u32 s59, s59, 1
              s_cbranch_scc1 L_bwx
              s_waitcnt lgkmcnt(0)
              s_cmp_lt_u32 s54, 32
              s_cbranch_scc1 L_bw""")
    else:
        BR = [12, 13, 39, 53][:bdep]
        for k, r in enumerate(BR):
            if k: A(f"s_sleep {bsl}")
            A(f"s_mov_b32 s{r}, -1\ns_atomic_and s{r}, s[24:25], 0 glc")
        A(f"s_mov_b32 s59, {spin*16}\nL_bw:")
        for r in BR:
            A(f"""s_add_u32 s48, s{r}, 1
                  s_cbranch_scc1 L_bn{r}
                  s_cmp_gt_u32 s48, 32
                  s_cbranch_scc1 L_bwx
                  s_mov_b32 s{r}, -1
                  s_atomic_and s{r}, s[24:25], 0 glc
                  L_bn{r}:""")
        A("s_sub_u32 s59, s59, 1\ns_cbranch_scc0 L_bw")
    A("L_bwx:\ns_barrier")
    stamp(6)
    G0 = buf(0)
    OA = buf(0) + 16
    DA = buf(1)
    DB = buf(1) + 8
    def gather():
        for k, so in enumerate(("s17", "s66", "s65", "s31")):
            A(f"buffer_load_dwordx4 v[{G0+4*k}:{G0+4*k+3}], v{X(5)}, s[40:43], {so} offen sc1")
    gather()
    A(f"""s_mov_b32 s59, {spin}
          s_mov_b32 s49, 0x41f80000
          s_waitcnt vmcnt(4)
          s_barrier""")
    stamp(11)
    C("wave v owns 16 of the 64 columns: transposed operands of all 128 + 56 rows, GLU product meanwhile")
    for k in range(4): A(f"ds_read_b64_tr_b16 v[{VW+16+2*k}:{VW+17+2*k}], v5 offset:{L_WD + 2048*k}")
    for k in range(4):
        for u in range(2): A(f"ds_read_b64_tr_b16 v[{VW+4*k+2*u}:{VW+4*k+2*u+1}], v5 offset:{L_WW + 4096*k + 2048*u}")
    A(f"""s_waitcnt lgkmcnt(8)
          v_mfma_f32_16x16x32_bf16 v[{DB}:{DB+3}], v[{HR+4}:{HR+7}], v[{VW+16}:{VW+19}], 0
          v_mfma_f32_16x16x32_bf16 v[{DB}:{DB+3}], v[{HR+8}:{HR+11}], v[{VW+20}:{VW+23}], v[{DB}:{DB+3}]
          s_branch L_p1c
          L_p1:
          s_mov_b64 exec, vcc""")
    gather()
    A("L_p1c:\ns_waitcnt vmcnt(0)")
    for k in range(16): A(f"v_xor_b32 v{G0+k}, s{68+(k&3)}, v{G0+k}")
    for k in range(4): A(f"v_or3_b32 v{VT+k}, v{G0+3*k}, v{G0+3*k+1}, v{G0+3*k+2}")
    A(f"""v_or3_b32 v{VT}, v{VT}, v{G0+12}, v{G0+13}
          v_or3_b32 v{VT+1}, v{VT+1}, v{G0+14}, v{G0+15}
          v_or3_b32 v{VT}, v{VT}, v{VT+2}, v{VT+3}
          v_bitop3_b32 v{VT}, v{VT}, v{VT+1}, v{X(13)} bitop3:0x54
          s_sub_u32 s59, s59, 1
          v_cmp_ne_u32 vcc, 0, v{VT}
          s_cbranch_scc1 L_p1ok
          s_cbranch_vccnz L_p1
          L_p1ok:
          s_mov_b64 exec, -1""")
    stamp(7)
    C("sum over the 16 splits: lanes 0..31 end with batch 0, 32..63 with batch 1; even rows elements 0,1 of a granule, odd rows 2,3")
    for o in (0, 8, 2, 10): A(f"v_pk_add_f32 v[{G0+o}:{G0+o+1}], v[{G0+o}:{G0+o+1}], v[{G0+o+4}:{G0+o+5}]")
    for r in range(4): A(f"v_permlane32_swap_b32 v{G0+r}, v{G0+8+r}")
    for r in (0, 2, 1, 3): A(f"v_add_f32 v{G0+r}, v{G0+r}, v{G0+8+r}")
    A(f"""v_permlane16_swap_b32 v{G0}, v{G0+2}
          v_mul_f32 v{DB}, v{DB}, v{HR+3}
          v_permlane16_swap_b32 v{G0+1}, v{G0+3}
          v_add_f32 v{G0}, v{G0}, v{G0+2}
          v_add_f32 v{G0+1}, v{G0+1}, v{G0+3}
          s_nop 0
          v_add_f32_dpp v{G0}, v{G0}, v{G0} row_ror:8 {dppf}
          v_add_f32_dpp v{G0+1}, v{G0+1}, v{G0+1} row_ror:8 {dppf}
          v_cvt_pk_bf16_f32 v{G0}, v{G0}, v{G0+1}
          ds_write_b32 v{X(8)}, v{G0} offset:{L_R}
          s_waitcnt lgkmcnt(0)
          s_barrier""")
    stamp(8)
    for k in range(4): A(f"ds_read_b128 v[{OA+4*k}:{OA+4*k+3}], v{X(9)} offset:{L_R + 64*k}")
    for k in range(4):
        d = DA + 4 * (k & 1)
        A(f"s_waitcnt lgkmcnt({3-k})")
        A(f"v_mfma_f32_16x16x32_bf16 v[{d}:{d+3}], v[{OA+4*k}:{OA+4*k+3}], v[{VW+4*k}:{VW+4*k+3}], {'0' if k < 2 else f'v[{d}:{d+3}]'}")
    C("each 64-byte segment takes 8 sums and one arrival count in a single returning add; the last of the 32 adders writes the output")
    A(f"""s_mov_b32 exec_lo, 0xff8001ff
          s_mov_b32 exec_hi, 0xff8001ff
          s_nop 4
          v_fmac_f32 v{DB}, v{HR+2}, v{DA}
          v_fmac_f32 v{DB}, v{HR+2}, v{DA+4}
          v_cndmask_b32 v22, v{DB}, 1.0, s[60:61]
          buffer_atomic_add_f32 v22, v{X(10)}, s[40:43], s18 offen sc0 sc1
          s_waitcnt vmcnt(0)""")
    stamp(9)
    A(f"""v_cmp_eq_f32 vcc, s49, v22
          v_add_f32 v20, v{DB}, v22
          s_bfe_i32 s56, vcc_lo, 0x10008
          s_bfe_i32 s57, vcc_lo, 0x10017
          s_bfe_i32 s62, vcc_hi, 0x10008
          s_bfe_i32 s63, vcc_hi, 0x10017
          v_cvt_pk_bf16_f32 v20, v20, v20
          s_pack_ll_b32_b16 s54, s56, s57
          s_pack_ll_b32_b16 s55, s62, s63
          s_and_b32 exec_lo, s54, 0xff0000ff
          s_and_b32 exec_hi, s55, 0xff0000ff
          s_cbranch_execz L_sdone
          buffer_store_short v20, v{X(11)}, s[20:23], s19 offen sc1
          s_cmp_eq_u32 s19, 0
          s_cbranch_scc0 L_sdone
          s_cmp_eq_u32 s56, 0
          s_cbranch_scc1 L_sdone
          s_mov_b64 exec, 1
          v_mov_b32 v20, s67
          buffer_store_dword v20, v{X(11)}, s[40:43], 0 offen sc1""")
    if probe >= 0:
        A(f"""s_waitcnt lgkmcnt(0)
              s_sub_u32 s62, s{72+2*probe}, s72
              s_min_u32 s62, s62, 20000
              s_mul_i32 s62, s62, {pmul}
              s_add_u32 s62, s62, 10000
              L_probe:
              s_memrealtime s[98:99]
              s_waitcnt lgkmcnt(0)
              s_sub_u32 s63, s98, s72
              s_cmp_lt_u32 s63, s62
              s_cbranch_scc1 L_probe""")
    A("L_sdone:")
    dump(12)
    A("s_endpgm")

    page()
    A("L_tch1:\ns_branch L_tback")
    C("---- helper wave: s46 = tag of this launch, s50..s53 its bytes")
    A("L_helper:")
    instream[0] = False
    HX, HW, HD, HG = 16, 32, 88, 116
    A(f"""v_lshrrev_b32 v1, 2, v3
          v_lshl_add_u32 v1, v2, 2, v1
          v_lshlrev_b32 v8, 7, v1
          v_and_b32 v6, 3, v3
          v_lshl_add_u32 v8, v6, 3, v8
          v_bfe_u32 v1, v1, 1, 2
          v_lshlrev_b32 v1, 5, v1
          v_add_u32 v8, v8, v1
          v_xor_b32 v9, 32, v8
          v_xor_b32 v10, 64, v8
          v_xor_b32 v11, 0x60, v8
          v_and_b32 v14, 1, v3
          v_mul_u32_u24 v6, 896, v14
          v_lshl_add_u32 v6, v2, 3, v6
          v_bfe_u32 v7, v3, 1, 2
          v_lshl_add_u32 v7, v7, 2, v2
          v_lshlrev_b32 v7, 4, v7
          v_mov_b32 v15, 0xffffff00
          v_mov_b32 v30, 0
          v_and_b32 v1, 2, v3
          v_cmp_ne_u32 s[60:61], 0, v1
          v_and_b32 v1, 4, v3
          v_cmp_ne_u32 s[62:63], 0, v1
          s_lshl_b32 s57, s64, 13
          s_lshl_b32 s58, s31, 11
          s_add_u32 s57, s57, s58
          s_lshl_b32 s58, s30, 8
          s_add_u32 s57, s57, s58
          s_add_u32 s57, s57, {W_Q}
          s_mul_i32 s44, s31, 224
          v_add_u32 v1, s44, v6
          v_lshl_add_u32 v104, v14, 16, v7
          s_mov_b32 s47, 0
          s_waitcnt lgkmcnt(0)
          s_add_u32 s46, s46, 0x01010101
          s_and_b32 s50, s46, 0xff
          s_bfe_u32 s51, s46, 0x80008
          s_bfe_u32 s52, s46, 0x80010
          s_lshr_b32 s53, s46, 24
          s_waitcnt vmcnt(2)""")
    stamp(1)
    C("two trips: x times the wq tile, then x times a tile of w_gate or w_up; partial sums go out with the tag in the low byte")
    A("L_tile:")
    for k in range(7):
        A(f"ds_read_b64 v[{HX+2*k}:{HX+2*k+1}], v1 offset:{L_X + 32*k}")
        for ct in range(4):
            r = HW + 14 * ct + 2 * k
            A(f"ds_read_b64_tr_b16 v[{r}:{r+1}], v{8+ct} offset:{L_W + 2048*k}")
    A("s_waitcnt lgkmcnt(0)")
    for ct in range(4):
        r = HW + 14 * ct + 12
        A(f"v_mfma_f32_16x16x16_bf16 v[{HD+4*ct}:{HD+4*ct+3}], v[{r}:{r+1}], v[{HX+12}:{HX+13}], 0")
    A("s_nop 2")
    for k2 in range(3):
        for ct in range(4):
            r = HW + 14 * ct + 4 * k2
            A(f"v_mfma_f32_16x16x32_bf16 v[{HD+4*ct}:{HD+4*ct+3}], v[{r}:{r+3}], v[{HX+4*k2}:{HX+4*k2+3}], v[{HD+4*ct}:{HD+4*ct+3}]")
    A("s_nop 5")
    for r in range(4): A(f"v_cndmask_b32 v{HD+r}, v{HD+r}, v{HD+4+r}, s[60:61]")
    for r in range(4): A(f"v_cndmask_b32 v{HD+8+r}, v{HD+8+r}, v{HD+12+r}, s[60:61]")
    for r in range(4): A(f"v_cndmask_b32 v{HD+r}, v{HD+r}, v{HD+8+r}, s[62:63]")
    for r in range(4): A(f"v_and_or_b32 v{HD+r}, v{HD+r}, v15, s{50+r}")
    A(f"""s_mov_b32 exec_lo, 0x00ff00ff
          s_mov_b32 exec_hi, 0x00ff00ff
          buffer_store_dwordx4 v[{HD}:{HD+3}], v104, s[40:43], s57 offen sc1
          s_mov_b64 exec, -1
          s_cmp_eq_u32 s47, 1
          s_cbranch_scc1 L_tiledone""")
    stamp(2)
    C("zero what later atomics add to: ticket counters (splits 0..3), arrival counters (batch 0, splits 8..11), output segments (workgroups 32..38)")
    A(f"""s_waitcnt vmcnt(1)
          s_and_b32 s67, s2, 15
          s_lshr_b32 s56, s2, 4
          s_lshl_b32 s56, s56, 2
          s_and_b32 s57, s2, 3
          s_add_u32 s56, s56, s57
          s_mul_i32 s56, s56, {cs}
          s_add_u32 s56, s56, {W_CNT}
          s_cmp_lt_u32 s67, 4
          s_cbranch_scc1 L_z1
          s_add_u32 s56, s56, {cs//2}
          s_and_b32 s57, s2, 0x8c
          s_cmp_eq_u32 s57, 8
          s_cbranch_scc0 L_noz1
          L_z1:
          s_mov_b64 exec, 1
          buffer_store_dword v30, v30, s[40:43], s56 offen sc1
          s_mov_b64 exec, -1
          L_noz1:
          s_sub_u32 s44, s2, 32
          s_cmp_lt_u32 s44, 7
          s_cbranch_scc0 L_noz2
          v_lshrrev_b32 v1, 2, v0
          v_mul_u32_u24 v1, {astr}, v1
          v_and_b32 v31, 3, v0
          v_lshl_add_u32 v1, v31, 4, v1
          v_mov_b32 v32, 0
          v_mov_b32 v33, 0
          v_mov_b32 v34, 0
          v_mov_b32 v35, 0
          s_mul_i32 s56, s44, {16*astr}
          s_add_u32 s56, s56, {W_A}
          buffer_store_dwordx4 v[32:35], v1, s[40:43], s56 offen sc1
          L_noz2:
          s_cmp_ge_u32 s67, 14
          s_cbranch_scc1 L_gate
          s_lshr_b32 s45, s2, 4
          s_mul_i32 s45, s45, 14
          s_add_u32 s55, s67, s45
          s_mul_i32 s54, s55, 2341
          s_lshr_b32 s54, s54, 16
          s_mul_i32 s45, s54, 28
          s_sub_u32 s55, s55, s45
          s_and_b32 s56, s54, 3
          s_mul_i32 s48, s56, {112*3584}
          s_lshl_b32 s45, s55, 7
          s_add_u32 s48, s48, s45
          v_mul_u32_u24 v4, 3584, v13
          v_add_u32 v4, v4, v12
          s_cmp_ge_u32 s54, 4
          s_cselect_b32 s36, s18, s16
          s_cselect_b32 s37, s19, s17
          s_mov_b32 s38, 1605632""")
    assert all((i * 2341) >> 16 == i // 28 for i in range(224))
    tile_dma("L_gdma", 3584)
    A("s_branch L_gate\nL_tch2:\ns_branch L_tback")
    C("mixing gate g = sigmoid(sum(x * gate_w)) with the reference's roundings")
    A(f"""L_gate:
          v_lshrrev_b32 v1, 5, v0
          v_mul_u32_u24 v1, 896, v1
          v_add_u32 v1, v1, v107
          ds_read_b128 v[40:43], v1 offset:{L_X}
          ds_read_b128 v[44:47], v1 offset:{L_X+16}
          v_mov_b32 v{HG}, 0
          s_mov_b32 exec_lo, 0x0fffffff
          s_mov_b32 exec_hi, 0x0fffffff
          s_waitcnt lgkmcnt(0)""")
    for k in range(8):
        A(f"""v_lshlrev_b32 v48, 16, v{108+k}
              v_and_b32 v49, 0xffff0000, v{108+k}
              v_lshlrev_b32 v50, 16, v{40+k}
              v_and_b32 v51, 0xffff0000, v{40+k}
              v_mul_f32 v48, v48, v50
              v_mul_f32 v49, v49, v51
              v_cvt_pk_bf16_f32 v48, v48, v49
              v_lshlrev_b32 v49, 16, v48
              v_and_b32 v48, 0xffff0000, v48
              v_add_f32 v{HG}, v{HG}, v49
              v_add_f32 v{HG}, v{HG}, v48""")
    A("s_mov_b64 exec, -1")
    for d in red + ("row_mirror",):
        A(f"s_nop 1\nv_add_f32_dpp v{HG}, v{HG}, v{HG} {d} {dppf}")
    A(f"""v_mov_b32 v48, v{HG}
          s_nop 1
          v_permlane16_swap_b32 v{HG}, v48
          v_add_f32 v{HG}, v{HG}, v48
          v_cvt_pk_bf16_f32 v{HG}, v{HG}, v{HG}
          v_and_b32 v{HG}, 0xffff0000, v{HG}
          v_mul_f32 v{HG}, 0x{f2u(-LOG2E):08x}, v{HG}
          v_exp_f32 v{HG}, v{HG}
          s_nop 0
          v_add_f32 v{HG}, 1.0, v{HG}
          v_rcp_f32 v{HG}, v{HG}
          s_nop 0
          v_cvt_pk_bf16_f32 v{HG}, v{HG}, v{HG}
          v_and_b32 v{HG}, 0xffff0000, v{HG}
          v_sub_f32 v{HG+1}, 1.0, v{HG}
          v_cvt_pk_bf16_f32 v{HG+1}, v{HG+1}, v{HG+1}
          v_and_b32 v{HG+1}, 0xffff0000, v{HG+1}
          v_lshrrev_b32 v1, 2, v0
          s_mov_b32 exec_lo, 1
          s_mov_b32 exec_hi, 1
          ds_write_b64 v1, v[{HG}:{HG+1}] offset:{L_GT}
          s_mov_b64 exec, -1
          s_waitcnt vmcnt(0)
          s_cmp_ge_u32 s67, 14
          s_cbranch_scc1 L_tiledone
          s_mov_b32 s47, 1
          s_mul_i32 s57, s54, {2*7168}
          s_lshl_b32 s44, s55, 8
          s_add_u32 s57, s57, s44
          s_add_u32 s57, s57, {W_G}
          s_mul_i32 s44, s56, 224
          v_add_u32 v1, s44, v6
          v_mul_u32_u24 v104, 7168, v14
          v_add_u32 v104, v104, v7
          s_branch L_tile""")
    C("gather the four partial sums of q for this (batch, kv head)")
    A("L_tiledone:")
    stamp(4)
    def untag(base, n):
        for k in range(n):
            for r in range(4): A(f"v_xor_b32 v{base+4*k+r}, s{50+r}, v{base+4*k+r}")
        regs = [base + i for i in range(4 * n)]
        A(f"v_or3_b32 v1, v{regs[0]}, v{regs[1]}, v{regs[2]}")
        i = 3
        while i < len(regs):
            if i + 1 < len(regs): A(f"v_or3_b32 v1, v1, v{regs[i]}, v{regs[i+1]}"); i += 2
            else: A(f"v_or_b32 v1, v1, v{regs[i]}"); i += 1
        A("v_and_b32 v1, 0xff, v1")
    A(f"""s_lshr_b32 s58, s2, 4
          s_lshl_b32 s58, s58, 13
          s_add_u32 s58, s58, {W_Q}
          v_add_u32 v105, 0x1000, v5
          s_mov_b32 s59, {spin}
          L_qpoll:""")
    for rb in range(4):
        for hf in range(2):
            o = rb * 2048 + hf * 1024
            A(f"buffer_load_dwordx4 v[{32+8*rb+4*hf}:{35+8*rb+4*hf}], {'v5' if o < 4096 else 'v105'}, s[40:43], s58 offen offset:{o & 4095} sc1")
    A("s_waitcnt vmcnt(0)")
    untag(32, 8)
    A("""v_cmp_ne_u32 vcc, 0, v1
         s_sub_u32 s59, s59, 1
         s_cbranch_scc1 L_qok
         s_cbranch_vccz L_qok
         s_mov_b64 exec, vcc
         s_branch L_qpoll
         L_qok:
         s_mov_b64 exec, -1""")
    for r in range(8): A(f"v_add_f32 v{32+r}, v{32+r}, v{40+r}")
    for r in range(8): A(f"v_add_f32 v{48+r}, v{48+r}, v{56+r}")
    for r in range(8): A(f"v_add_f32 v{32+r}, v{32+r}, v{48+r}")
    for r in range(4): A(f"v_cvt_pk_bf16_f32 v{32+r}, v{32+2*r}, v{33+2*r}")
    A(f"""v_lshlrev_b32 v1, 3, v0
          v_mov_b32 v37, 1
          ds_write_b64 v1, v[32:33] offset:{L_Q}
          ds_write_b64 v1, v[34:35] offset:{L_Q+512}
          s_waitcnt lgkmcnt(0)
          ds_write_b32 v30, v37 offset:{L_F}""")
    stamp(3)
    A("s_branch L_tch5\nL_tch9:")
    C("after the K phase: export the scores of the shared tiles, publish max-shifted log-sum-exp of the 1024 keys")
    SP = {n: 6 + i for i, n in enumerate(dorder)}
    A(f"""s_lshr_b32 s45, s2, 4
          s_lshl_b32 s45, s45, 15
          s_add_u32 s45, s45, {W_S}""")
    dep("s45", "s45", "s2", ["x0", "x1", "x2", "p"], SP)
    A("v_and_b32 v4, 3, v0\nv_lshlrev_b32 v4, 4, v4")
    for i, nm in enumerate(["w0", "w1", "t0", "t1"]):
        A(f"v_bfe_u32 v1, v0, {2+i}, 1\nv_lshl_add_u32 v4, v1, {SP[nm]}, v4")
    ldswait("L_kw", L_F + 8, 4, 30, 31, sleep=16)
    for k in range(4): A(f"ds_read_b128 v[{80+4*k}:{83+4*k}], v5 offset:{L_S + 1024*k}")
    nl = PT * 16
    A(f"""s_mov_b32 s47, 0x{f2u(LOG2E/16):08x}
          s_mov_b32 exec_lo, 0x{(1 << min(nl, 32)) - 1:x}
          s_mov_b32 exec_hi, 0x{(1 << max(nl - 32, 0)) - 1:x}
          s_waitcnt lgkmcnt(0)
          {"s_nop 0" if xe else "buffer_store_dwordx4 v[80:83], v4, s[40:43], s45 offen sc1"}
          s_mov_b64 exec, -1""")
    for k in range(4):
        for d in range(4):
            h, o = d >> 1, 4 * k + 2 * (d & 1)
            A(f"v_lshlrev_b32 v{48+16*h+o}, 16, v{80+4*k+d}")
            A(f"v_and_b32 v{48+16*h+o+1}, 0xffff0000, v{80+4*k+d}")
    def allred(op, regs, full=True):
        for d in red + ("row_mirror",):
            A("s_nop 0")
            for r in regs: A(f"{op}_dpp v{r}, v{r}, v{r} {d} {dppf}")
        if full:
            for sw in ("v_permlane16_swap_b32", "v_permlane32_swap_b32"):
                for r in regs: A(f"v_mov_b32 v{r+2}, v{r}")
                A("s_nop 1")
                for r in regs: A(f"{sw} v{r}, v{r+2}")
                for r in regs: A(f"{op} v{r}, v{r}, v{r+2}")
    for h in range(2):
        b = 48 + 16 * h
        A(f"v_max3_f32 v{32+h}, v{b}, v{b+1}, v{b+2}")
        for i in range(3, 15, 2): A(f"v_max3_f32 v{32+h}, v{32+h}, v{b+i}, v{b+i+1}")
        A(f"v_max_f32 v{32+h}, v{32+h}, v{b+15}")
    allred("v_max_f32", [32, 33])
    for h in range(2): A(f"v_mul_f32 v{32+h}, s47, v{32+h}")
    for i in range(32): A(f"v_fma_f32 v{48+i}, v{48+i}, s47, -v{32+(i>>4)}")
    for i in range(32): A(f"v_exp_f32 v{48+i}, v{48+i}")
    for h in range(2): A(f"v_add_f32 v{36+h}, v{48+16*h}, v{49+16*h}")
    for i in range(2, 16):
        for h in range(2): A(f"v_add_f32 v{36+h}, v{36+h}, v{48+16*h+i}")
    allred("v_add_f32", [36, 37])
    A(f"""v_log_f32 v36, v36
          v_log_f32 v37, v37
          v_mov_b32 v35, s46
          v_add_f32 v32, v32, v36
          v_add_f32 v34, v33, v37
          v_mov_b32 v33, s46
          s_lshl_b32 s44, s2, 4
          s_add_u32 s44, s44, {W_T}
          s_mov_b64 exec, 1
          s_waitcnt vmcnt(0)
          buffer_store_dwordx4 v[32:35], v5, s[40:43], s44 offen sc1
          s_mov_b64 exec, -1
          s_and_b32 s44, s44, 0xfffff700
          s_lshr_b32 s45, s2, 7
          v_xor_b32 v6, s45, v2
          v_and_b32 v6, 1, v6
          v_lshlrev_b32 v6, 11, v6
          v_lshl_add_u32 v6, v3, 4, v6
          v_and_b32 v1, 3, v0
          v_lshlrev_b32 v1, 1, v1
          v_bfe_u32 v14, v0, 2, 1
          v_add_u32 v1, v1, v14
          v_mul_u32_u24 v4, 7168, v1
          v_lshl_add_u32 v4, v13, 4, v4
          v_add_u32 v7, 128, v4""")
    consumer("s54", "s55")
    A(f"""s_mul_i32 s45, s54, 224
          s_lshl_b32 s47, s55, 8
          s_add_u32 s47, s47, {2*7168}
          s_sub_u32 s47, s47, s45
          s_mov_b32 exec_lo, 0
          s_mov_b32 exec_hi, 0xffff0000
          v_mov_b32 v7, s47
          s_mov_b64 exec, -1
          s_add_u32 s45, s45, {W_G}
          s_add_u32 s47, s45, {8*7168}""")
    stamp(7)
    C("late in the V phase: statistics of the kv head's 32 workgroups (rows alternate own / other batch), gate/up partials of 56 hidden units;")
    C("spare lanes look at the record of the workgroup that zeroed this column block's output segments")
    ldswait("L_tw", L_F + 20, 1, 30, 31, sleep=16)
    A(f"""s_mov_b32 s59, {spin}
          s_branch L_lp1
          L_lp:
          s_sleep 16
          L_lp1:
          buffer_load_dwordx4 v[40:43], v6, s[40:43], s44 offen sc1
          buffer_load_dwordx4 v[64:67], v4, s[40:43], s45 offen sc1
          buffer_load_dwordx4 v[68:71], v7, s[40:43], s45 offen sc1
          buffer_load_dwordx4 v[72:75], v4, s[40:43], s47 offen sc1
          buffer_load_dwordx4 v[76:79], v7, s[40:43], s47 offen sc1
          s_waitcnt vmcnt(0)""")
    untag(64, 4)
    A("""v_xor_b32 v41, s46, v41
         v_xor_b32 v43, s46, v43
         v_or3_b32 v1, v1, v41, v43
         s_sub_u32 s59, s59, 1
         v_cmp_ne_u32 vcc, 0, v1
         s_cbranch_scc1 L_lpok
         s_cbranch_vccnz L_lp
         L_lpok:""")
    stamp(8)
    for d in red[:2]:
        for r in range(16): A(f"v_add_f32_dpp v{64+r}, v{64+r}, v{64+r} {d} {dppf}")
    for r in range(8): A(f"v_cvt_pk_bf16_f32 v{72+r}, v{64+r}, v{72+r}")
    for r in range(8): A(f"v_lshlrev_b32 v{64+r}, 16, v{72+r}")
    for r in range(8): A(f"v_and_b32 v{72+r}, 0xffff0000, v{72+r}")
    for r in range(8): A(f"v_mul_f32 v{64+r}, 0x{f2u(-LOG2E):08x}, v{64+r}")
    for r in range(8): A(f"v_exp_f32 v{64+r}, v{64+r}")
    for r in range(8): A(f"v_add_f32 v{64+r}, 1.0, v{64+r}")
    for r in range(8): A(f"v_rcp_f32 v{64+r}, v{64+r}")
    for r in range(8): A(f"v_cvt_pk_bf16_f32 v{64+r}, v{64+r}, v{64+r}")
    for r in range(8): A(f"v_and_b32 v{64+r}, 0xffff0000, v{64+r}")
    for r in range(8): A(f"v_mul_f32 v{64+r}, v{64+r}, v{72+r}")
    for r in range(4): A(f"v_cvt_pk_bf16_f32 v{64+r}, v{64+2*r}, v{65+2*r}")
    A(f"""v_lshlrev_b32 v1, 7, v14
          v_lshl_add_u32 v1, v13, 3, v1
          s_mov_b32 exec_lo, 0
          s_mov_b32 exec_hi, 0xffff0000
          v_mov_b32 v66, 0
          v_mov_b32 v67, 0
          s_mov_b32 exec_lo, 0x11111111
          s_mov_b32 exec_hi, 0x11111111
          ds_write_b64 v1, v[64:65] offset:{L_H}
          ds_write_b64 v1, v[66:67] offset:{L_H+64}
          s_mov_b64 exec, -1
          v_mov_b32 v48, v40
          v_mov_b32 v49, v42""")
    allred("v_max_f32", [48, 49], full=False)
    A("""v_sub_f32 v36, v40, v48
         v_sub_f32 v37, v42, v49
         v_exp_f32 v36, v36
         v_exp_f32 v37, v37
         s_nop 0""")
    allred("v_add_f32", [36, 37], full=False)
    A(f"""v_log_f32 v36, v36
          v_log_f32 v37, v37
          v_mov_b32 v50, 2
          v_add_f32 v48, v48, v36
          v_add_f32 v49, v49, v37
          s_mov_b64 exec, 1
          ds_write_b64 v30, v[48:49] offset:{L_LS}
          s_waitcnt lgkmcnt(0)
          ds_write_b32 v30, v50 offset:{L_F}
          s_waitcnt lgkmcnt(0)""")
    stamp(9)
    dump(10)
    A("L_end:")
    A("s_endpgm")
    L.append('.section .rodata,"a"')
    L.append(".p2align 6")
    L.append(f".amdhsa_kernel {KNAME}")
    L.append("""  .amdhsa_next_free_vgpr 212
  .amdhsa_next_free_sgpr 102
  .amdhsa_accum_offset 212
  .amdhsa_group_segment_fixed_size 0
  .amdhsa_kernarg_size 104
  .amdhsa_user_sgpr_count 2
  .amdhsa_user_sgpr_kernarg_segment_ptr 1
  .amdhsa_system_sgpr_workgroup_id_x 1
.end_amdhsa_kernel""")
    return "\n".join(L) + "\n"

if __name__ == "__main__":
    kw = json.loads(sys.argv[1]) if len(sys.argv) > 1 else {}
    sys.stdout.write(gen(**kw))
```
